```python
import torch

def _softmax(x, axis=-1):
    return torch.softmax(x, dim=axis)
def _gelu(x):
    return torch.nn.functional.gelu(x, approximate="tanh")
def _silu(x):
    return torch.nn.functional.silu(x)
def _sigmoid(x):
    return torch.sigmoid(x)
def _layernorm(x, axis=-1, eps=1e-5):
    m = x.mean(dim=axis, keepdim=True)
    v = x.var(dim=axis, keepdim=True, unbiased=False)
    return (x - m) / torch.sqrt(v + eps)
def _scatter_add(tgt, idx, src, axis=0):
    return tgt.clone().index_add_(axis, idx, src)
def _segment_sum(src, seg, n):
    out = torch.zeros((n,) + src.shape[1:], dtype=src.dtype)
    return out.index_add_(0, seg, src)
def _pad(x, pw):
    flat = tuple(v for pair in reversed(pw) for v in pair)
    return torch.nn.functional.pad(x, flat)

kernel_name = 'gated_mix__linear_attn_block__grouped_kv_mqa__prompt'

def setup_inputs():

    _w = (lambda a: (lambda t: t.to(torch.bfloat16) if t.is_floating_point() else t)(torch.as_tensor(a)))
    def _A_setup():
        B, S, D = 1, 2048, 512
        return {
            "x": _w((lambda *s: torch.randn(*s, dtype=torch.bfloat16) * 0.05)(B, S, D)),
            "wqkv": _w((lambda *s: torch.randn(*s, dtype=torch.bfloat16) * 1.6)(D, 3 * D)),
            "wo": _w((lambda *s: torch.randn(*s, dtype=torch.bfloat16) * 0.05)(D, D)),
        }
    _A_in = _A_setup()

    def _B_setup():
        B, S, D, H = 1, 2048, 512, 32
        Dh = D // H
        return {
            "x": _w((lambda *s: torch.randn(*s, dtype=torch.bfloat16) * 0.05)(B, S, D)),
            "wq": _w((lambda *s: torch.randn(*s, dtype=torch.bfloat16) * 1.6)(D, H * Dh)),
            "wk": _w((lambda *s: torch.randn(*s, dtype=torch.bfloat16) * 1.6)(D, Dh)),
            "wv": _w((lambda *s: torch.randn(*s, dtype=torch.bfloat16) * 0.05)(D, Dh)),
            "wo": _w((lambda *s: torch.randn(*s, dtype=torch.bfloat16) * 0.05)(H * Dh, D)),
        }
    _B_in = _B_setup()

    return {
        "A_x": _A_in["x"],
        "A_wqkv": _A_in["wqkv"],
        "A_wo": _A_in["wo"],
        "B_x": _B_in["x"],
        "B_wq": _B_in["wq"],
        "B_wk": _B_in["wk"],
        "B_wv": _B_in["wv"],
        "B_wo": _B_in["wo"],
        "gate_w": _w((lambda *s: torch.randn(*s, dtype=torch.bfloat16) * 0.05)(512) * 16.0),
    }

def reference(A_x, A_wqkv, A_wo, B_x, B_wq, B_wk, B_wv, B_wo, gate_w):
    def _A_ref(x, wqkv, wo):
        B, S, D = x.shape
        H = 32; Dh = D // H
        qkv = (lambda x, *d: x.permute(*d))((x @ wqkv).reshape(B, S, 3, H, Dh), 2, 0, 3, 1, 4)
        q, k, v = qkv[0], qkv[1], qkv[2]
        phi = lambda t: torch.where(t > 0, t + 1, torch.exp(t)) + 1e-6
        pq, pk = phi(q), phi(k)
        kv = torch.einsum("bhsd,bhse->bhde", pk, v)
        z = torch.einsum("bhsd->bhd", pk)
        num = torch.einsum("bhqd,bhde->bhqe", pq, kv)
        den = torch.einsum("bhqd,bhd->bhq", pq, z)[..., None] + 1e-6
        o = num / den
        return (lambda x, *d: x.permute(*d))(o, 0, 2, 1, 3).reshape(B, S, D) @ wo

    def _B_ref(x, wq, wk, wv, wo):
        B, S, D = x.shape
        H = 32
        Dh = D // H
        q = (lambda x, *d: x.permute(*d))((x @ wq).reshape(B, S, H, Dh), 0, 2, 1, 3)
        k = x @ wk
        v = x @ wv
        scores = torch.einsum("bhqd,bkd->bhqk", q, k) * (Dh ** -0.5)
        p = _softmax(scores, axis=-1)
        o = torch.einsum("bhqk,bkd->bhqd", p, v)
        return (lambda x, *d: x.permute(*d))(o, 0, 2, 1, 3).reshape(B, S, H * Dh) @ wo

    x = A_x
    g = _sigmoid((x * gate_w).sum(-1, keepdims=True))
    a = _A_ref(x, A_wqkv, A_wo)
    b = _B_ref(x, B_wq, B_wk, B_wv, B_wo)
    return g * a + (1 - g) * b
```

```python
import re

REG = re.compile(r'^(-|abs\()?([vsa])(?:\[(\d+):(\d+)\]|(\d+))\)?$')

def parse_reg(tok):
    tok = tok.strip()
    if tok == 'vcc': return [('s', 106), ('s', 107)]
    if tok == 'exec': return [('s', 126), ('s', 127)]
    if tok == 'm0': return [('s', 124)]
    m = REG.match(tok)
    if not m: return []
    k = m.group(2)
    if m.group(3) is not None:
        return [(k, i) for i in range(int(m.group(3)), int(m.group(4)) + 1)]
    return [(k, int(m.group(5)))]

TRANS = ('v_exp_f32', 'v_log_f32', 'v_rcp_f32', 'v_rsq_f32', 'v_sqrt_f32', 'v_sin_f32', 'v_cos_f32')

def split_ops(s):
    out, depth, cur = [], 0, ''
    for ch in s:
        if ch in '[(': depth += 1
        if ch in '])': depth -= 1
        if ch == ',' and depth == 0:
            out.append(cur.strip()); cur = ''
        else:
            cur += ch
    if cur.strip(): out.append(cur.strip())
    return out

class Ins:
    def __init__(self, text):
        self.text = text
        t = text.split(';')[0].strip()
        self.is_label = t.endswith(':')
        self.is_dir = t.startswith('.')
        self.op = ''
        self.w = set(); self.r = set()
        self.kind = 'other'
        self.passes = 0
        self.srcc = set(); self.srcab = set()
        self.states = 1
        if not t or self.is_label or self.is_dir:
            self.states = 0
            return
        parts = t.split(None, 1)
        op = parts[0]; self.op = op
        rest = parts[1] if len(parts) > 1 else ''
        ops = split_ops(rest)
        if ops:
            last = ops[-1].split()
            mods = ' '.join(last[1:])
            ops[-1] = last[0] if last else ''
        else:
            mods = ''
        self.mods = mods
        R = [parse_reg(o) for o in ops]
        base = op.replace('_e32', '').replace('_e64', '')
        if op == 's_nop':
            self.states = int(ops[0], 0) + 1; self.kind = 'nop'; return
        if op.startswith('v_mfma') or op.startswith('v_smfmac'):
            self.kind = 'mfma'
            self.passes = 8 if '32x32' in op else 4
            self.w = set(R[0])
            self.srcab = set(R[1]) | set(R[2])
            if op.startswith('v_smfmac'):
                self.srcc = set(R[0]); self.srcab |= set(R[3])
            else:
                self.srcc = set(R[3])
            self.r = self.srcab | self.srcc
            return
        if op.startswith('v_'):
            self.kind = 'valu'
            self.trans = base in TRANS
            if base.startswith('v_cmp'):
                self.w = set(R[0]); self.r = set().union(*R[1:])
                if base.startswith('v_cmpx'): self.w |= set(parse_reg('exec'))
            elif base in ('v_add_co_u32', 'v_sub_co_u32', 'v_addc_co_u32', 'v_subb_co_u32'):
                self.w = set(R[0]) | set(R[1]); self.r = set().union(*R[2:])
            elif base.startswith('v_permlane') and 'swap' in base:
                self.w = set(R[0]) | set(R[1]); self.r = set(self.w)
            else:
                self.w = set(R[0]); self.r = set().union(*R[1:]) if len(R) > 1 else set()
                if base in ('v_fmac_f32', 'v_pk_fmac_f16', 'v_dot2c_f32_bf16') or 'UNUSED_PRESERVE' in mods or 'dpp' in op or 'row_' in mods or 'quad_perm' in mods:
                    self.r |= set(R[0])
            self.dpp = ('dpp' in op) or ('row_' in mods) or ('quad_perm' in mods)
            return
        if op.startswith('ds_'):
            self.kind = 'ds'
            if op.startswith('ds_read') or '_rtn' in op or op.startswith('ds_bpermute') or op.startswith('ds_permute') or op.startswith('ds_swizzle'):
                self.w = set(R[0]); self.r = set().union(set(), *R[1:])
            else:
                self.r = set().union(*R)
            self.addtid = 'addtid' in op
            return
        if op.startswith('buffer_') or op.startswith('global_'):
            self.kind = 'vmem'
            lds = ' lds' in (' ' + mods) or '_lds_' in op
            self.lds = lds
            if lds:
                self.r = set().union(*R) | set(parse_reg('m0'))
            elif '_load' in op:
                self.w = set(R[0]); self.r = set().union(*R[1:])
            elif 'atomic' in op and 'sc0' in mods:
                self.w = set(R[0]); self.r = set().union(*R)
            else:
                self.r = set().union(*R) if R else set()
                if 'store_dwordx4' in op or 'store_dwordx3' in op:
                    d = R[0] if op.startswith('buffer_') else R[1]
                    self.wide = set(d)
            return
        if op.startswith('s_'):
            self.kind = 'salu'
            if op.startswith('s_cmp') or op.startswith('s_cbranch') or op in ('s_branch', 's_waitcnt', 's_barrier', 's_endpgm', 's_setprio', 's_sleep'):
                self.r = set().union(*R) if R else set()
            else:
                self.w = set(R[0]) if R else set(); self.r = set().union(*R[1:]) if len(R) > 1 else set()
                if 'saveexec' in op: self.w |= set(parse_reg('exec'))
            return

def need(p, c):
    n = 0
    vw = {x for x in p.w if x[0] != 's'}
    sw = {x for x in p.w if x[0] == 's'}
    if p.kind == 'valu':
        if c.kind == 'mfma' and vw & c.r: n = max(n, 2)
        if c.kind == 'mfma' and (('s', 126) in p.w): n = max(n, 4)
        if c.kind == 'valu':
            if p.trans and not c.trans and vw & c.r: n = max(n, 1)
            if p.trans and c.trans and vw & c.r: n = max(n, 1)
            if c.dpp and vw & c.r: n = max(n, 2)
            if c.op.startswith('v_permlane') and vw & c.r: n = max(n, 2)
            if (c.op.startswith('v_readfirstlane') or c.op.startswith('v_readlane')) and vw & c.r: n = max(n, 1)
            if sw & c.r:
                n = max(n, 2)
                if c.op.startswith('v_readlane') or c.op.startswith('v_writelane'): n = max(n, 4)
            if ('s', 126) in p.w and (c.dpp): n = max(n, 5)
            if ('s', 126) in p.w and (c.op.startswith('v_read') or c.op.startswith('v_permlane')): n = max(n, 4)
            if ('sdwa' in p.op or 'op_sel' in p.mods) and vw & (c.r | c.w): n = max(n, 1)
        if c.kind == 'vmem' and sw & c.r: n = max(n, 5)
        if c.kind == 'salu' and sw & c.r: n = max(n, 1)
        if p.trans and c.kind in ('ds', 'vmem') and vw & c.r: n = max(n, 1)
    if p.kind == 'mfma':
        big = p.passes == 8
        if c.kind == 'mfma':
            if p.w & c.srcab: n = max(n, 12 if big else 8)
            if p.w & c.srcc:
                if not (p.w == c.srcc and p.passes == c.passes): n = max(n, 10 if big else 6)
            if p.w & c.w and not (p.w & c.srcc) and p.passes != c.passes: n = max(n, 12 if big else 8)
        elif c.kind in ('valu', 'ds', 'vmem'):
            if p.w & (c.r | c.w): n = max(n, 12 if big else 8)
            if c.kind == 'valu' and p.srcc & c.w: n = max(n, 7 if big else 3)
            if c.kind in ('ds', 'vmem') and p.srcc & c.w: n = max(n, 7 if big else 3)
    if p.kind == 'salu':
        if ('s', 124) in p.w and c.kind == 'vmem' and getattr(c, 'lds', False): n = max(n, 1)
        if ('s', 124) in p.w and c.kind == 'ds' and getattr(c, 'addtid', False): n = max(n, 1)
    if p.kind == 'vmem' and hasattr(p, 'wide'):
        if p.wide & c.w: n = max(n, 2)
    return n

class Prog:
    def __init__(self):
        self.lines = []
    def __call__(self, text):
        for l in text.split('\n'):
            l = l.strip()
            if l: self.lines.append(l)
    def label(self, name): self.lines.append(name + ':')
    def pad(self, n):
        while n > 0:
            k = min(n, 16); self.lines.append(f's_nop {k-1}'); n -= k
    stamps = False
    def stamp(self, i, real=False):
        if not self.stamps: return
        self(f"{'s_memrealtime' if real else 's_memtime'} s[{70+2*i}:{71+2*i}]")
    def dump_stamps(self, n, srd, swg, swave, base, tmpv=(250, 251)):
        if not self.stamps: return
        a, d = tmpv
        self("s_waitcnt lgkmcnt(0)")
        self("s_mov_b64 exec, 1")
        self(f"s_lshl_b32 s68, s{swg}, 4")
        self(f"s_add_u32 s68, s68, s{swave}")
        self(f"s_lshl_b32 s68, s68, 6")
        self(f"s_add_u32 s68, s68, {base:#x}")
        self(f"v_mov_b32 v{a}, 0")
        for i in range(n):
            self(f"v_mov_b32 v{d}, s{70+2*i}")
            self(f"buffer_store_dword v{d}, v{a}, s[{srd}:{srd+3}], s68 offen offset:{4*i}")
            self("s_nop 1")
    def extend(self, other): self.lines += other.lines
    def finalize(self):
        out = []; hist = []
        inserted = 0
        for l in self.lines:
            ins = Ins(l)
            if ins.states == 0:
                out.append(ins); continue
            dist = 0; req = 0
            for p in reversed(hist):
                n = need(p, ins)
                if n > dist: req = max(req, n - dist)
                dist += p.states
                if dist >= 20: break
            if req:
                nop = Ins(f's_nop {req-1}'); out.append(nop); hist.append(nop); inserted += req
            out.append(ins); hist.append(ins)
            if ins.op in ('s_branch', 's_endpgm', 's_setpc_b64'):
                hist = []
            if len(hist) > 40: hist = hist[-40:]
        self.inserted = inserted
        txt = []
        for i in out:
            if i.is_label or i.is_dir: txt.append(i.text)
            else: txt.append('    ' + i.text)
        return '\n'.join(txt) + '\n'
```

```python
import struct
def f2u(x): return struct.unpack('<I', struct.pack('<f', x))[0]
LOG2E = 1.4426950408889634
QF   = 0x000000
PQF  = 0x200000
KF   = 0x400000
VF   = 0x410000
GT   = 0x420000
KVF  = 0x430000
FLG  = 0x440000
WBF  = 0x500000
WAF  = 0x580000
KVP  = 0x600000
OUTA = 0x800000
WS_SIZE = 0x1000000
KVN = 8704
STAMP1 = 0xC00000
STAMP2 = 0xD00000
```

```python
from asm import Prog
from common import *

K1_LDS = 131072 + 16384 + 1024
XTRA = 131072
GATE_L = 131072 + 16384

def srd(p, d, base, size):
    p(f"s_mov_b32 s{d}, s{base}")
    p(f"s_mov_b32 s{d+1}, s{base+1}")
    p(f"s_mov_b32 s{d+2}, {size:#x}")
    p(f"s_mov_b32 s{d+3}, 0x20000")

SX, SW1, SW2, SE, SWS, SG = 24, 28, 32, 36, 40, 44
S_W, S_RB, S_CB, S_ST2, S_SOX, S_SO1, S_SO2, S_MX, S_MW = 48, 49, 50, 51, 52, 53, 54, 55, 56
S_L2E, S_EPS = 58, 60
ACC = 64
def acc(rt, u): return ACC + (rt * 2 + u) * 16
def xf(b, rt): return 32 + b * 16 + rt * 4
def wf(b, u): return 32 + b * 16 + 8 + u * 4

def dma_stage(slot):
    G = []
    for i in range(4):
        G.append([f"s_add_u32 m0, s{S_MX}, {slot*32768 + i*1024:#x}",
                  f"buffer_load_dwordx4 v{12+i}, s[{SX}:{SX+3}], s{S_SOX} offen lds"])
    for i in range(2):
        G.append([f"s_add_u32 m0, s{S_MW}, {slot*32768 + 16384 + i*1024:#x}",
                  f"buffer_load_dwordx4 v{16+i}, s[{SW1}:{SW1+3}], s{S_SO1} offen lds"])
    for i in range(2):
        G.append([f"s_add_u32 m0, s{S_MW}, {slot*32768 + 24576 + i*1024:#x}",
                  f"buffer_load_dwordx4 v{18+i}, s[{SW2}:{SW2+3}], s{S_SO2} offen lds"])
    G.append([f"s_add_u32 s{S_SOX}, s{S_SOX}, 128",
              f"s_add_u32 s{S_SO1}, s{S_SO1}, {64*3072:#x}",
              f"s_add_u32 s{S_SO2}, s{S_SO2}, s{S_ST2}"])
    return G

def reads(s, t):
    slot = s & 3; b = t & 1
    hi = slot >> 1; so = (slot & 1) * 32768
    L = []
    for rt in range(2):
        L.append(f"ds_read_b128 v[{xf(b,rt)}:{xf(b,rt)+3}], v{2 + hi*4 + t} offset:{so + rt*4096}")
    for u in range(2):
        for q in range(2):
            L.append(f"ds_read_b64_tr_b16 v[{wf(b,u)+2*q}:{wf(b,u)+2*q+1}], v{10+hi} offset:{so + 16384 + u*8192 + (16*t + 4*q)*128}")
    return L

def mfmas(s, t, ct_form):
    b = t & 1
    L = []
    for rt in range(2):
        for u in range(2):
            a = acc(rt, u)
            X = f"v[{xf(b,rt)}:{xf(b,rt)+3}]"; W = f"v[{wf(b,u)}:{wf(b,u)+3}]"
            C = f"v[{a}:{a+15}]"
            if s == 0 and t == 0: C = "1.0" if u == 0 else "0"
            A, B = (W, X) if ct_form else (X, W)
            L.append(f"v_mfma_f32_32x32x16_bf16 v[{a}:{a+15}], {A}, {B}, {C}")
    return L

def mainloop(p, ct_form):
    vm = {0: 24, 1: 16, 2: 16, 3: 16, 4: 16, 5: 16, 6: 8, 7: 0}
    p.stamp(2)
    p(f"s_waitcnt vmcnt({vm[0]})")
    p("s_barrier")
    p.stamp(3)
    for l in reads(0, 0): p(l)
    pend = []
    for s in range(8):
        for t in range(4):
            M = mfmas(s, t, ct_form)
            if t < 3:
                for l in reads(s, t + 1): p(l)
                p("s_waitcnt lgkmcnt(6)")
                for m in M:
                    p(m)
                    if pend:
                        for l in pend.pop(0): p(l)
            else:
                p("s_waitcnt lgkmcnt(0)")
                p(M[0]); p(M[1])
                while pend:
                    for l in pend.pop(0): p(l)
                if s < 7:
                    p(f"s_waitcnt vmcnt({vm[s+1]})")
                    p("s_barrier")
                    if s in (0, 3, 6): p.stamp(4 + s // 3)
                    for l in reads(s + 1, 0): p(l)
                    if s + 4 < 8: pend = dma_stage(s & 3)
                p(M[2])
                if pend:
                    for l in pend.pop(0): p(l)
                p(M[3])
                if pend:
                    for l in pend.pop(0): p(l)

def phi_pack(p, a, F, T):
    for half in range(2):
        b = a + half * 8
        for j in range(4):
            p(f"v_pk_fma_f32 v[{T+2*j}:{T+2*j+1}], v[{b+2*j}:{b+2*j+1}], s[{S_L2E}:{S_L2E+1}], s[{S_L2E}:{S_L2E+1}] neg_lo:[0,0,1] neg_hi:[0,0,1]")
        for j in range(8):
            p(f"v_exp_f32_e64 v{T+j}, v{T+j} clamp")
        for j in range(8):
            p(f"v_max_f32 v{T+j}, v{T+j}, v{b+j}")
        for j in range(4):
            p(f"v_pk_add_f32 v[{T+2*j}:{T+2*j+1}], v[{T+2*j}:{T+2*j+1}], s[{S_EPS}:{S_EPS+1}]")
        for j in range(4):
            p(f"v_cvt_pk_bf16_f32 v{F+half*4+j}, v{T+2*j}, v{T+2*j+1}")

def pack(p, a, F):
    for j in range(8):
        p(f"v_cvt_pk_bf16_f32 v{F+j}, v{a+2*j}, v{a+2*j+1}")

def gen_k1(name, st="", stamps=False):
    p = Prog()
    p.stamps = stamps
    p.label(name)
    p.stamp(0, True); p.stamp(1)
    p("s_cmp_ge_u32 s2, 256")
    p("s_cbranch_scc1 K1_END")
    p("s_load_dwordx16 s[4:19], s[0:1], 0")
    p("s_load_dwordx2 s[20:21], s[0:1], 64")
    p("s_load_dwordx2 s[22:23], s[0:1], 88")
    p("s_getpc_b64 s[62:63]")
    p("v_lshlrev_b32 v22, 4, v0")
    p("v_lshrrev_b32 v21, 6, v0")
    p("global_load_dwordx4 v[128:131], v22, s[62:63]")
    p("v_add_u32 v23, 5120, v22")
    p("global_load_dwordx4 v[132:135], v23, s[62:63]")
    p("v_add_u32 v23, 10240, v22")
    p("global_load_dwordx4 v[136:139], v23, s[62:63]")
    p(f"v_readfirstlane_b32 s{S_W}, v21")
    p("v_and_b32 v1, 63, v0")
    p("s_lshr_b32 s3, s2, 3")
    p(f"s_lshr_b32 s{S_CB}, s3, 2")
    p("s_and_b32 s3, s3, 3")
    p(f"s_and_b32 s{S_RB}, s2, 6")
    p(f"s_lshl_b32 s{S_RB}, s{S_RB}, 1")
    p(f"s_add_u32 s{S_RB}, s{S_RB}, s3")
    p("s_and_b32 s57, s2, 1")
    p(f"s_cmp_eq_u32 s{S_W}, 4")
    p("s_cbranch_scc1 K1_AUX")
    p("v_lshrrev_b32 v20, 3, v1")
    p("v_and_b32 v21, 7, v1")
    p("v_lshrrev_b32 v22, 4, v1")
    p("v_xor_b32 v23, v21, v22")
    p("v_lshlrev_b32 v23, 4, v23")
    p("v_lshl_add_u32 v23, v20, 10, v23")
    p(f"s_lshl_b32 s3, s{S_RB}, 17")
    p(f"s_lshl_b32 s{S_MX}, s{S_W}, 15")
    p(f"s_add_u32 s3, s3, s{S_MX}")
    p("v_add_u32 v12, s3, v23")
    p("v_xor_b32 v13, 64, v12")
    p("v_add_u32 v13, 0x2000, v13")
    p("v_add_u32 v14, 0x4000, v12")
    p("v_add_u32 v15, 0x4000, v13")
    p("v_and_b32 v22, 1, v22")
    p("v_lshlrev_b32 v22, 2, v22")
    p("v_xor_b32 v21, v21, v22")
    p("v_lshlrev_b32 v21, 4, v21")
    p(f"s_lshl_b32 s3, s{S_W}, 4")
    p("v_add_u32 v20, s3, v20")
    p(f"s_lshl_b32 s3, s{S_CB}, 7")
    p("v_add_u32 v21, s3, v21")
    p("s_cmp_eq_u32 s57, 0")
    p("s_cselect_b32 s3, 0, 1024")
    p("s_cselect_b32 s61, 0, 2048")
    p("s_movk_i32 s60, 3072")
    p(f"s_cselect_b32 s{S_ST2}, 1024, s60")
    p("v_mad_u32_u24 v16, v20, s60, v21")
    p("v_add_u32 v16, s3, v16")
    p(f"v_add_u32 v17, {8*3072}, v16")
    p(f"v_mad_u32_u24 v18, v20, s{S_ST2}, v21")
    p("v_add_u32 v18, s61, v18")
    p(f"s_lshl_b32 s3, s{S_ST2}, 3")
    p("v_add_u32 v19, s3, v18")
    p(f"s_lshl_b32 s{S_ST2}, s{S_ST2}, 6")
    p(f"s_lshl_b32 s{S_MX}, s{S_W}, 12")
    p(f"s_lshl_b32 s{S_MW}, s{S_W}, 11")
    p(f"s_mov_b32 s{S_SOX}, 0")
    p(f"s_mov_b32 s{S_SO1}, 0")
    p(f"s_mov_b32 s{S_SO2}, 0")
    p.stamp(11)
    p("s_waitcnt lgkmcnt(0)")
    p.stamp(12)
    srd(p, SX, 4, 2048 * 1024)
    srd(p, SW1, 6, 512 * 3072)
    p("s_cmp_eq_u32 s57, 0")
    p(f"s_cselect_b32 s{SW2}, s12, s6")
    p(f"s_cselect_b32 s{SW2+1}, s13, s7")
    p(f"s_mov_b32 s3, {512*3072:#x}")
    p(f"s_cselect_b32 s{SW2+2}, {512*1024:#x}, s3")
    p(f"s_mov_b32 s{SW2+3}, 0x20000")
    for s in range(4):
        for g in dma_stage(s):
            for l in g: p(l)
    srd(p, SWS, 22, WS_SIZE)
    p("v_and_b32 v20, 31, v1")
    p("v_lshrrev_b32 v21, 5, v1")
    p("v_bfe_u32 v22, v1, 1, 3")
    p("v_xor_b32 v22, v22, v21")
    p("v_lshlrev_b32 v22, 4, v22")
    p("v_lshl_add_u32 v22, v20, 7, v22")
    p(f"s_lshr_b32 s3, s{S_W}, 1")
    p("s_lshl_b32 s3, s3, 13")
    p("v_add_u32 v2, s3, v22")
    for t in range(1, 4): p(f"v_xor_b32 v{2+t}, {t*32}, v2")
    for t in range(4): p(f"v_add_u32 v{6+t}, 0x10000, v{2+t}")
    p("v_bfe_u32 v22, v1, 2, 2")
    p("v_lshl_add_u32 v23, v21, 3, v22")
    p("v_lshlrev_b32 v23, 7, v23")
    p("v_bfe_u32 v24, v1, 4, 1")
    p("v_lshlrev_b32 v24, 1, v24")
    p("v_bfe_u32 v25, v1, 1, 1")
    p("v_or_b32 v24, v24, v25")
    p(f"s_and_b32 s3, s{S_W}, 1")
    p("s_lshl_b32 s3, s3, 2")
    p("v_or_b32 v24, s3, v24")
    p("v_bfe_u32 v25, v1, 3, 1")
    p("v_lshlrev_b32 v25, 2, v25")
    p("v_xor_b32 v24, v24, v25")
    p("v_lshl_add_u32 v23, v24, 4, v23")
    p("v_and_b32 v25, 1, v1")
    p("v_lshl_add_u32 v10, v25, 3, v23")
    p("v_add_u32 v11, 0x10000, v10")
    p(f"s_mov_b32 s{S_L2E}, {f2u(LOG2E):#x}")
    p(f"s_mov_b32 s{S_L2E+1}, {f2u(LOG2E):#x}")
    p(f"s_mov_b32 s{S_EPS}, {f2u(1e-6):#x}")
    p(f"s_mov_b32 s{S_EPS+1}, {f2u(1e-6):#x}")
    p("s_cmp_eq_u32 s57, 0")
    p("s_cbranch_scc0 K1_KV")
    p(f"s_lshl_b32 s3, s{S_RB}, 2")
    p(f"s_and_b32 s62, s{S_W}, 2")
    p("s_add_u32 s3, s3, s62")
    p("s_lshl_b32 s3, s3, 5")
    p(f"s_lshl_b32 s62, s{S_CB}, 2")
    p("s_add_u32 s3, s3, s62")
    p(f"s_and_b32 s62, s{S_W}, 1")
    p("s_lshl_b32 s62, s62, 1")
    p("s_add_u32 s3, s3, s62")
    p("s_lshl_b32 s3, s3, 10")
    p("v_lshl_add_u32 v26, v1, 4, s3")
    p(f"s_mov_b32 s62, {QF + 32768:#x}")
    p(f"s_mov_b32 s63, {PQF:#x}")
    p(f"s_mov_b32 s64, {PQF + 32768:#x}")
    mainloop(p, True)
    p.stamp(7)
    F = 32
    for rt in range(2):
        pack(p, acc(rt, 1), F + rt * 8)
        so = "0" if rt == 0 else "s62"
        assert QF == 0
        for e in range(2):
            p(f"buffer_store_dwordx4 v[{F+rt*8+4*e}:{F+rt*8+4*e+3}], v26, s[{SWS}:{SWS+3}], {so} offen offset:{e*1024} {st}")
    for rt in range(2):
        phi_pack(p, acc(rt, 0), 48 + rt * 8, 128)
        for e in range(2):
            p(f"buffer_store_dwordx4 v[{48+rt*8+4*e}:{48+rt*8+4*e+3}], v26, s[{SWS}:{SWS+3}], s{63+rt} offen offset:{e*1024} {st}")
    p.stamp(8)
    if stamps: p("s_waitcnt vmcnt(0)")
    p.stamp(9); p.stamp(10, True)
    p.dump_stamps(13, SWS, 2, S_W, STAMP1, (4, 5))
    p("s_endpgm")
    p.label("K1_KV")
    p(f"s_lshl_b32 s3, s{S_RB}, 1")
    p(f"s_lshr_b32 s62, s{S_W}, 1")
    p("s_add_u32 s3, s3, s62")
    p(f"s_mul_i32 s3, s3, {KVN*4}")
    p(f"s_lshl_b32 s62, s{S_CB}, 1")
    p(f"s_and_b32 s63, s{S_W}, 1")
    p("s_add_u32 s62, s62, s63")
    p(f"s_mul_i32 s62, s62, {2*1088}")
    p("s_add_u32 s3, s3, s62")
    p(f"s_add_u32 s3, s3, {KVP:#x}")
    p("v_and_b32 v22, 15, v1")
    p("v_lshl_add_u32 v22, v22, 1, v21")
    p("v_lshl_add_u32 v26, v22, 5, s3")
    p("v_lshl_add_u32 v27, v21, 5, s3")
    for j in range(4): p(f"v_mov_b32 v{28+j}, 0x3f803f80")
    mainloop(p, False)
    p.stamp(7)
    F = 32
    KVA, ZA = 144, 160
    first = True
    for rt in range(2):
        pack(p, acc(rt, 1), F + rt * 8)
    for rt in range(2):
        phi_pack(p, acc(rt, 0), 48 + rt * 8, 128)
        for e in range(2):
            A = f"v[{48+rt*8+4*e}:{48+rt*8+4*e+3}]"; B = f"v[{F+rt*8+4*e}:{F+rt*8+4*e+3}]"
            c1 = "0" if first else f"v[{KVA}:{KVA+15}]"; c2 = "0" if first else f"v[{ZA}:{ZA+15}]"
            p(f"v_mfma_f32_32x32x16_bf16 v[{KVA}:{KVA+15}], {A}, {B}, {c1}")
            p(f"v_mfma_f32_32x32x16_bf16 v[{ZA}:{ZA+15}], {A}, v[28:31], {c2}")
            first = False
    p("s_mov_b32 exec_lo, 0x0000ffff")
    p("s_mov_b32 exec_hi, 0x0000ffff")
    for q in range(2):
        p(f"buffer_store_dwordx4 v[{KVA+4*q}:{KVA+4*q+3}], v26, s[{SWS}:{SWS+3}], 0 offen offset:{q*16} {st}")
    p("s_mov_b32 exec_lo, 0xffff0000")
    p("s_mov_b32 exec_hi, 0xffff0000")
    for q in range(2):
        p(f"buffer_store_dwordx4 v[{KVA+8+4*q}:{KVA+8+4*q+3}], v26, s[{SWS}:{SWS+3}], 0 offen offset:{1088+q*16} {st}")
    p("s_mov_b32 exec_lo, 1")
    p("s_mov_b32 exec_hi, 1")
    for e in range(2):
        for q in range(2):
            p(f"buffer_store_dwordx4 v[{ZA+8*e+4*q}:{ZA+8*e+4*q+3}], v27, s[{SWS}:{SWS+3}], 0 offen offset:{1024+e*1088+q*16} {st}")
    p.stamp(8)
    if stamps: p("s_waitcnt vmcnt(0)")
    p.stamp(9); p.stamp(10, True)
    p.dump_stamps(13, SWS, 2, S_W, STAMP1, (4, 5))
    p("s_endpgm")
    p.label("K1_AUX")
    p("v_lshlrev_b32 v12, 4, v1")
    p("v_bfe_u32 v20, v1, 2, 2")
    p("v_and_b32 v21, 3, v1")
    p("v_lshrrev_b32 v22, 4, v1")
    p("s_waitcnt lgkmcnt(0)")
    srd(p, SWS, 22, WS_SIZE)
    p("s_cmp_eq_u32 s57, 0")
    p("s_cbranch_scc0 K1_AUXT")
    p(f"s_cmp_lt_u32 s{S_CB}, 4")
    p(f"s_cselect_b32 s{SE}, s14, s16")
    p(f"s_cselect_b32 s{SE+1}, s15, s17")
    p(f"s_mov_b32 s{SE+2}, 0x4000")
    p(f"s_mov_b32 s{SE+3}, 0x20000")
    srd(p, SG, 20, 1024)
    p(f"s_mov_b32 m0, {GATE_L:#x}")
    p(f"buffer_load_dwordx4 v12, s[{SG}:{SG+3}], 0 offen lds")
    p(f"s_mov_b32 m0, {XTRA:#x}")
    p("s_mov_b32 s3, 0")
    for i in range(4):
        for j in range(4):
            p(f"buffer_load_dwordx4 v12, s[{SE}:{SE+3}], s3 offen offset:{j*1024} lds")
        if i < 3:
            p("s_add_u32 m0, m0, 4096")
            p("s_add_u32 s3, s3, 4096")
    p(f"s_and_b32 s62, s{S_CB}, 3")
    p("s_lshl_b32 s62, s62, 1")
    p(f"s_lshr_b32 s63, s{S_CB}, 2")
    p("s_add_u32 s62, s62, s63")
    p("v_and_b32 v23, 15, v1")
    p("v_bfe_u32 v24, v1, 1, 3")
    p("v_xor_b32 v24, v24, v22")
    p("v_lshlrev_b32 v24, 4, v24")
    p("v_lshl_add_u32 v24, v23, 7, v24")
    p("s_lshl_b32 s3, s62, 11")
    p("v_add_u32 v2, s3, v24")
    p("v_xor_b32 v3, 64, v2")
    p("v_xor_b32 v4, 0x800, v2")
    p("v_xor_b32 v5, 0x800, v3")
    p("v_lshl_add_u32 v6, v22, 3, v20")
    p("v_lshlrev_b32 v6, 5, v6")
    p("v_lshl_add_u32 v6, v21, 3, v6")
    p(f"v_add_u32 v6, {XTRA:#x}, v6")
    p("v_lshlrev_b32 v7, 4, v22")
    p(f"v_add_u32 v7, {GATE_L:#x}, v7")
    for j in range(12): p(f"v_mov_b32 v{64+j}, 0")
    p("s_mov_b32 s64, 0")
    p("s_waitcnt vmcnt(0)")
    p.label("K1_AUXL")
    p("s_barrier")
    for u in range(2):
        b = 32 + u * 16
        p(f"ds_read_b128 v[{b}:{b+3}], v{2+u}")
        p(f"ds_read_b128 v[{b+4}:{b+7}], v{4+u}")
        p(f"ds_read_b64_tr_b16 v[{b+8}:{b+9}], v6 offset:{u*1024}")
        p(f"ds_read_b64_tr_b16 v[{b+10}:{b+11}], v6 offset:{u*1024+128}")
        p(f"ds_read_b128 v[{b+12}:{b+15}], v7 offset:{u*64}")
    for r in (2, 3, 4, 5):
        p(f"v_add_u32 v{r}, 0x8000, v{r}")
        p(f"v_and_b32 v{r}, 0x1ffff, v{r}")
    p("v_add_u32 v6, 2048, v6")
    p("v_add_u32 v7, 128, v7")
    p("s_add_u32 s64, s64, 1")
    p("s_waitcnt lgkmcnt(0)")
    p(f"s_cmp_lt_u32 s{S_CB}, 4")
    p("s_cbranch_scc0 K1_AUXB")
    for u in range(2):
        b = 32 + u * 16
        p(f"v_mfma_f32_16x16x32_bf16 v[64:67], v[{b+8}:{b+11}], v[{b}:{b+3}], v[64:67]")
        p(f"v_mfma_f32_16x16x32_bf16 v[68:71], v[{b+8}:{b+11}], v[{b+4}:{b+7}], v[68:71]")
    p("s_branch K1_AUXC")
    p.label("K1_AUXB")
    for u in range(2):
        b = 32 + u * 16
        p(f"v_mfma_f32_16x16x32_bf16 v[64:67], v[{b}:{b+3}], v[{b+8}:{b+11}], v[64:67]")
        p(f"v_mfma_f32_16x16x32_bf16 v[68:71], v[{b+4}:{b+7}], v[{b+8}:{b+11}], v[68:71]")
    p.label("K1_AUXC")
    for u in range(2):
        b = 32 + u * 16
        p(f"v_mfma_f32_16x16x32_bf16 v[72:75], v[{b+12}:{b+15}], v[{b}:{b+3}], v[72:75]")
    p("s_cmp_lt_u32 s64, 8")
    p("s_cbranch_scc1 K1_AUXL")
    p(f"s_lshl_b32 s3, s{S_RB}, 3")
    p("s_add_u32 s62, s62, s3")
    p.pad(8)
    p(f"v_mul_f32 v72, {f2u(-LOG2E):#x}, v72")
    p("v_exp_f32 v72, v72")
    p("v_add_f32 v72, 1.0, v72")
    p("v_rcp_f32 v72, v72")
    p("s_lshl_b32 s3, s62, 6")
    p(f"s_add_u32 s3, s3, {GT:#x}")
    p("v_lshlrev_b32 v8, 2, v1")
    p("s_mov_b64 exec, 0xffff")
    p(f"buffer_store_dword v72, v8, s[{SWS}:{SWS+3}], s3 offen {st}")
    p("s_mov_b64 exec, -1")
    p("s_lshr_b32 s3, s62, 1")
    p("s_lshl_b32 s3, s3, 10")
    p(f"s_cmp_lt_u32 s{S_CB}, 4")
    p("s_cbranch_scc0 K1_AUXV")
    c = 0.25 * LOG2E
    for j in range(8): p(f"v_mul_f32 v{64+j}, {f2u(c):#x}, v{64+j}")
    for j in range(4): p(f"v_cvt_pk_bf16_f32 v{76+j}, v{64+2*j}, v{65+2*j}")
    p("v_and_b32 v24, 1, v22")
    p("v_lshl_add_u32 v24, v24, 5, v23")
    p("v_lshlrev_b32 v24, 4, v24")
    p("v_lshrrev_b32 v25, 1, v22")
    p("v_lshl_add_u32 v24, v25, 3, v24")
    p(f"s_add_u32 s3, s3, {KF:#x}")
    p(f"buffer_store_dwordx2 v[76:77], v24, s[{SWS}:{SWS+3}], s3 offen {st}")
    p(f"buffer_store_dwordx2 v[78:79], v24, s[{SWS}:{SWS+3}], s3 offen offset:256 {st}")
    p("s_endpgm")
    p.label("K1_AUXV")
    for j in range(4): p(f"v_cvt_pk_bf16_f32 v{76+j}, v{64+2*j}, v{65+2*j}")
    p("v_lshrrev_b32 v24, 1, v22")
    p("v_lshl_add_u32 v24, v24, 4, v23")
    p("v_lshlrev_b32 v24, 4, v24")
    p("v_and_b32 v25, 1, v22")
    p("v_lshl_add_u32 v24, v25, 3, v24")
    p(f"s_add_u32 s3, s3, {VF:#x}")
    p(f"buffer_store_dwordx2 v[76:77], v24, s[{SWS}:{SWS+3}], s3 offen offset:512 {st}")
    p(f"buffer_store_dwordx2 v[78:79], v24, s[{SWS}:{SWS+3}], s3 offen {st}")
    p("s_endpgm")
    p.label("K1_AUXT")
    p(f"s_lshl_b32 s62, s{S_RB}, 3")
    p(f"s_add_u32 s62, s62, s{S_CB}")
    p("s_cmp_lt_u32 s62, 64")
    p(f"s_cselect_b32 s{SE}, s18, s8")
    p(f"s_cselect_b32 s{SE+1}, s19, s9")
    p(f"s_mov_b32 s{SE+2}, 0x80000")
    p(f"s_mov_b32 s{SE+3}, 0x20000")
    p("s_bfe_u32 s63, s62, 0x40002")
    p("s_and_b32 s64, s62, 3")
    p("s_lshl_b32 s3, s63, 15")
    p("s_lshl_b32 s65, s64, 8")
    p("s_add_u32 s3, s3, s65")
    p("v_and_b32 v23, 15, v1")
    p("v_lshlrev_b32 v23, 4, v23")
    p("v_lshl_add_u32 v23, v22, 10, v23")
    p(f"s_mov_b32 m0, {XTRA:#x}")
    for i in range(8):
        p(f"buffer_load_dwordx4 v23, s[{SE}:{SE+3}], s3 offen lds")
        if i < 7:
            p("s_add_u32 m0, m0, 1024")
            p("s_add_u32 s3, s3, 4096")
    p("v_mov_b32 v30, 0")
    p("v_lshlrev_b32 v8, 2, v1")
    p("s_lshl_b32 s3, s62, 6")
    p(f"s_add_u32 s3, s3, {FLG:#x}")
    p("s_mov_b64 exec, 0xffff")
    p(f"buffer_store_dword v30, v8, s[{SWS}:{SWS+3}], s3 offen")
    p("s_mov_b64 exec, -1")
    p("s_cmp_lt_u32 s62, 64")
    p("s_cbranch_scc0 K1_AUXTA")
    p("v_lshrrev_b32 v24, 1, v22")
    p("v_lshlrev_b32 v24, 4, v24")
    p("v_and_b32 v25, 1, v22")
    p("v_lshl_add_u32 v24, v25, 2, v24")
    p("v_add_u32 v24, v24, v20")
    p("v_lshlrev_b32 v24, 8, v24")
    p("v_lshl_add_u32 v24, v21, 6, v24")
    p(f"v_add_u32 v24, {XTRA:#x}, v24")
    p("s_lshr_b32 s3, s63, 1")
    p("s_lshl_b32 s3, s3, 2")
    p("s_add_u32 s3, s3, s64")
    p("s_lshl_b32 s3, s3, 14")
    p("s_and_b32 s65, s63, 1")
    p("s_lshl_b32 s65, s65, 10")
    p("s_add_u32 s3, s3, s65")
    p(f"s_add_u32 s3, s3, {WBF:#x}")
    p("s_barrier")
    p("s_waitcnt vmcnt(0)")
    for ct in range(8):
        p(f"ds_read_b64_tr_b16 v[{32+4*ct}:{33+4*ct}], v24 offset:{ct*8}")
        p(f"ds_read_b64_tr_b16 v[{34+4*ct}:{35+4*ct}], v24 offset:{ct*8+2048}")
    p("s_waitcnt lgkmcnt(0)")
    for ct in range(8):
        p(f"buffer_store_dwordx4 v[{32+4*ct}:{35+4*ct}], v12, s[{SWS}:{SWS+3}], s3 offen offset:{(ct&1)*2048} sc1")
        if ct & 1 and ct < 7: p("s_add_u32 s3, s3, 4096")
    p("s_endpgm")
    p.label("K1_AUXTA")
    p("v_lshrrev_b32 v24, 1, v22")
    p("v_lshl_add_u32 v24, v24, 2, v20")
    p("v_lshlrev_b32 v24, 8, v24")
    p("v_and_b32 v25, 1, v22")
    p("v_lshl_add_u32 v24, v25, 5, v24")
    p("v_lshl_add_u32 v24, v21, 3, v24")
    p(f"v_add_u32 v24, {XTRA:#x}, v24")
    p("s_lshl_b32 s3, s64, 17")
    p("s_lshl_b32 s65, s63, 11")
    p("s_add_u32 s3, s3, s65")
    p(f"s_add_u32 s3, s3, {WAF:#x}")
    p("s_barrier")
    p("s_waitcnt vmcnt(0)")
    for sw in range(4):
        for hd in range(2):
            b = 32 + 8 * sw + 4 * hd
            p(f"ds_read_b64_tr_b16 v[{b}:{b+1}], v24 offset:{sw*64 + hd*4096}")
            p(f"ds_read_b64_tr_b16 v[{b+2}:{b+3}], v24 offset:{sw*64 + hd*4096 + 2048}")
    p("s_waitcnt lgkmcnt(0)")
    for sw in range(4):
        for hd in range(2):
            b = 32 + 8 * sw + 4 * hd
            p(f"buffer_store_dwordx4 v[{b}:{b+3}], v12, s[{SWS}:{SWS+3}], s3 offen offset:{hd*1024} sc1")
        if sw < 3: p("s_add_u32 s3, s3, 0x8000")
    p.label("K1_END")
    p("s_endpgm")
    return p
```

```python
from asm import Prog
from common import *
from k1 import srd

NOTES = """
Two launches.  proj_kernel: all input projections (bf16 MFMA GEMM, LDS-DMA ring), phi(), partial kv/z sums,
gate, and re-layout of both output-projection weights into MFMA fragment order (all into d_ws).
attn_kernel: one workgroup per 8 rows x 32 heads.  Waves 4-11 keep a 256-key slice of K/V in registers and
stream the 8 query blocks (S = K Q^T by MFMA, v_exp_f32, P.V and the row sum by sparse MFMA);
waves 0-3 reduce/normalise, run both output projections and write d_out.
Softmax shift: the first pass uses the stand-in shift 0; every row sum l is checked at run time to lie in
[2^-64, 2^64] (no overflow, no loss by underflow); if any row of the workgroup fails, the workgroup
recomputes its rows with the true row max subtracted (labels K2_SLOW*).
"""

LPL = 0
CNT = 12288
FF = CNT + 9 * 256
OACNT = FF + 8 * 256
REDO = OACNT + 256
ZEND = 20480
assert REDO + 256 <= ZEND
QL = 20480
OAF = QL + 9 * 1024
ZERO = OAF + 32768
PART = ZERO + 1024
PS = 16384
K2_LDS = PART + 6 * PS
assert K2_LDS <= 163840
IDX = 0xdddd
ZOFF = ZERO - IDX
def cnt(n): return (IDX * n) & 0xffffffff

SWS, SDBG, SOUT = 24, 28, 32
S_W, S_L, S_RT, S_SUB, S_B, S_SW, S_BAD = 40, 41, 42, 43, 44, 45, 46
S_SLOT, S_D, S_LW = 48, 49, 50

Q, K0, V0, S0, O0 = 4, 8, 40, 104, 136
def Kf(t): return f"v[{K0+4*t}:{K0+4*t+3}]"
def Vf(t, s): return f"v[{V0+8*t+4*s}:{V0+8*t+4*s+3}]"
def Sr(i): return S0 + 16 * (i & 1)
def Or(i): return O0 + 16 * (i & 1)

def drain(ob, par):
    return [f"ds_write_b128 v1, v[{ob}:{ob+3}]",
            f"ds_write_b128 v1, v[{ob+4}:{ob+7}] offset:1024",
            f"ds_write_addtid_b32 v{ob+8} offset:{LPL}",
            f"ds_add_u32 v3, v2 offset:{CNT + par*256}"]

def advance():
    return [f"s_cmp_eq_u32 s{S_SLOT}, 5",
            f"s_cselect_b32 s{S_D}, {(-5*PS) & 0xffffffff:#x}, s51",
            f"s_cselect_b32 s{S_SLOT}, -1, s{S_SLOT}",
            f"s_add_u32 s{S_SLOT}, s{S_SLOT}, 1",
            f"v_add_u32 v1, s{S_D}, v1",
            f"s_lshl_b32 s{S_D}, s{S_SLOT}, 11",
            f"s_add_u32 m0, s{S_D}, s{S_LW}"]

def attn_body(p, pos=(1, 4, 10)):
    for par in range(2):
        for t in range(8):
            sc, sn = Sr(t), Sr(t + 1)
            op = Or(par) if t > 0 else Or(par + 1)
            tp = (t - 1) & 7
            extra = {}
            ob = Or(par + 1)
            def put(i, L):
                for k, l in enumerate(L): extra.setdefault(i + k, []).append(l)
            if t == 1:
                if par == 1:
                    extra.setdefault(0, []).extend([f"s_cmp_eq_u32 s{S_B}, 3", "s_cbranch_scc1 K2_BP", "K2_BPRET:"])
                put(2, drain(ob, par))
                put(6, advance())
            if t == 2:
                put(2, [f"ds_read_b128 v[{ob}:{ob+3}], v2 offset:{ZOFF}",
                        f"ds_read_b128 v[{ob+4}:{ob+7}], v2 offset:{ZOFF}"])
                put(5, [f"ds_read_b32 v{ob+8}, v2 offset:{ZOFF}"])
                if par == 1:
                    put(6, [f"s_cmp_eq_u32 s{S_B}, 1", "s_cbranch_scc0 K2_P1", "s_setprio 2", "K2_P1:",
                            f"s_cmp_eq_u32 s{S_B}, 2", "s_cbranch_scc0 K2_P2", "s_setprio 1", "K2_P2:"][0:0])
            if t == 6:
                put(pos[1] + 1, [f"ds_read_b128 v[{Q}:{Q+3}], v0 offset:{(par+1)*1024}"])
            if t == 3 and par == 1:
                put(6, ["v_add_u32 v3, 512, v3"])
            if t == 7 and par == 1:
                put(6, ["v_add_u32 v0, 2048, v0"])
                put(12, [f"s_add_u32 s{S_B}, s{S_B}, 1", f"s_cmp_lt_u32 s{S_B}, 4"])
            if t == 2 and par == 1:
                extra.setdefault(7, []).extend([f"s_cmp_eq_u32 s{S_B}, 0", "s_cbranch_scc0 K2_PR", "K2_PRRET:"])
            for i in range(16):
                p(f"v_exp_f32 v{sc+i}, v{sc+i}")
                if i == pos[0]:
                    p(f"v_smfmac_f32_32x32x32_bf16 v[{op}:{op+15}], {Vf(tp,1)}, v[{sn+8}:{sn+15}], v2")
                if i == pos[1]:
                    if t < 7:
                        if par == 0: p(f"s_waitcnt vmcnt({3*(6-t)+2})")
                    else:
                        p("s_waitcnt vmcnt(0) lgkmcnt(0)")
                    p(f"v_mfma_f32_32x32x16_bf16 v[{sn}:{sn+15}], {Kf((t+1)&7)}, v[{Q}:{Q+3}], 0")
                if i == pos[2]:
                    oc = Or(par)
                    p(f"v_smfmac_f32_32x32x32_bf16 v[{oc}:{oc+15}], {Vf(t,0)}, v[{sc}:{sc+7}], v2")
                for l in extra.get(i, []): p(l)

def spin(p, lab, sleep, lim="0x100000"):
    p("s_add_u32 s53, s53, 1")
    p(f"s_cmp_gt_u32 s53, {lim}")
    p("s_cbranch_scc1 K2_END")
    p(f"s_sleep {sleep}")
    p(f"s_branch {lab}")

def gen_k2(name, stamps=False, ladder=True):
    p = Prog()
    p.stamps = stamps
    p.label(name)
    p.stamp(0, True); p.stamp(1)
    p("s_cmp_ge_u32 s2, 256")
    p("s_cbranch_scc1 K2_END")
    p("s_load_dwordx4 s[4:7], s[0:1], 72")
    p("s_load_dwordx2 s[8:9], s[0:1], 88")
    p("s_getpc_b64 s[62:63]")
    p("v_lshlrev_b32 v104, 4, v0")
    p("v_lshrrev_b32 v105, 6, v0")
    p("global_load_dwordx4 v[36:39], v104, s[62:63]")
    p(f"v_readfirstlane_b32 s{S_W}, v105")
    p("v_and_b32 v1, 63, v0")
    p("s_and_b32 s3, s2, 7")
    p("s_lshl_b32 s3, s3, 5")
    p(f"s_lshr_b32 s{S_L}, s2, 3")
    p(f"s_add_u32 s{S_L}, s{S_L}, s3")
    p(f"s_lshr_b32 s{S_RT}, s{S_L}, 2")
    p(f"s_and_b32 s{S_SUB}, s{S_L}, 3")
    p(f"s_mov_b32 s{S_B}, 0")
    p("s_mov_b32 s53, 0")
    p("s_setprio 3")
    p(f"s_sub_u32 s{S_SW}, s{S_W}, 4")
    p("s_cbranch_scc1 K2_SIDE")
    p("v_bfe_u32 v112, v1, 3, 2")
    p("v_lshlrev_b32 v112, 10, v112")
    p("v_and_b32 v113, 0x27, v1")
    p("v_lshl_add_u32 v112, v113, 4, v112")
    p(f"s_lshl_b32 s3, s{S_RT}, 15")
    p(f"s_lshl_b32 s10, s{S_SUB}, 7")
    p("s_add_u32 s3, s3, s10")
    p(f"s_lshl_b32 s10, s{S_SW}, 12")
    p("s_add_u32 s10, s10, s3")
    p("v_lshlrev_b32 v0, 4, v1")
    p("v_lshrrev_b32 v114, 5, v1")
    p("v_and_b32 v115, 15, v1")
    p("v_lshl_add_u32 v114, v114, 4, v115")
    p("v_lshlrev_b32 v114, 4, v114")
    p(f"s_lshl_b32 s11, s{S_SW}, 13")
    p(f"s_add_u32 s12, s11, {VF:#x}")
    p(f"s_add_u32 s11, s11, {KF:#x}")
    p("s_add_u32 s13, s11, 4096")
    p("s_add_u32 s14, s12, 4096")
    p(f"s_lshl_b32 s15, s{S_SW}, 10")
    p(f"s_add_u32 m0, s15, {QL}")
    p("s_mov_b32 s16, 0x0000ffff")
    p("s_mov_b32 s17, 0x0000ffff")
    p.stamp(6)
    p("s_waitcnt lgkmcnt(0)")
    p.stamp(7)
    srd(p, SWS, 8, WS_SIZE)
    W = f"s[{SWS}:{SWS+3}]"
    p(f"buffer_load_dwordx4 v[{Q}:{Q+3}], v112, {W}, s3 offen")
    p(f"buffer_load_dwordx4 v112, {W}, s10 offen lds")
    for t in range(8):
        p(f"buffer_load_dwordx4 {Kf(t)}, v0, {W}, s{11 if t < 4 else 13} offen offset:{(t&3)*1024}")
        p("s_mov_b64 exec, s[16:17]")
        for s in range(2):
            p(f"buffer_load_dwordx4 {Vf(t,s)}, v114, {W}, s{12 if t < 4 else 14} offen offset:{(t&3)*1024 + s*512}")
        p("s_mov_b64 exec, -1")
    p.stamp(8)
    p("s_not_b64 exec, s[16:17]")
    p("s_mov_b32 s18, 0x3f803f80")
    p("s_mov_b32 s19, 0x3f803f80")
    for r in range(32): p(f"v_pk_mov_b32 v[{V0+2*r}:{V0+2*r+1}], s[18:19], s[18:19]")
    p("s_mov_b64 exec, -1")
    for r in range(9): p(f"v_mov_b32 v{O0+r}, 0")
    p(f"v_mov_b32 v2, {IDX:#x}")
    p("v_lshlrev_b32 v3, 2, v1")
    p(f"s_lshl_b32 s3, s{S_SW}, 11")
    p(f"s_add_u32 s3, s3, {PART + 5*PS}")
    p("v_add_u32 v1, s3, v0")
    p(f"v_add_u32 v0, {QL}, v0")
    p(f"s_mov_b32 s{S_SLOT}, 5")
    p(f"s_mov_b32 s51, {PS}")
    p(f"s_lshl_b32 s{S_LW}, s{S_SW}, 8")
    p(f"s_add_u32 m0, s{S_LW}, {5*2048}")
    p.stamp(9)
    p("s_waitcnt vmcnt(23)")
    p(f"v_mfma_f32_32x32x16_bf16 v[{S0}:{S0+15}], {Kf(0)}, v[{Q}:{Q+3}], 0")
    p.stamp(2)
    p("s_barrier")
    p.stamp(3)
    p.pad(11)
    p(".p2align 6")
    p.label("K2_ATT")
    attn_body(p)
    p("s_cbranch_scc1 K2_ATT")
    ob = Or(1)
    p(f"v_smfmac_f32_32x32x32_bf16 v[{ob}:{ob+15}], {Vf(7,1)}, v[{Sr(1)+8}:{Sr(1)+15}], v2")
    for l in drain(ob, 0): p(l)
    p.stamp(4); p.stamp(5, True)
    p.dump_stamps(10, SWS, 2, S_W, STAMP2, (4, 5))
    p("s_endpgm")
    p.label("K2_BP")
    j = Or(0) + 10
    p(f"ds_read2st64_b32 v[{j}:{j+1}], v3 offset0:{(FF - 1536)//256} offset1:{(FF - 1536)//256 + 1}")
    p("s_waitcnt lgkmcnt(0)")
    p(f"v_and_b32 v{j}, v{j}, v{j+1}")
    p(f"v_cmp_ne_u32 vcc, 1, v{j}")
    p("s_cbranch_vccz K2_BPRET")
    spin(p, "K2_BP", 4)
    p.label("K2_PR")
    if ladder:
        p("s_setprio 2")
        p(f"s_cmp_eq_u32 s{S_B}, 1")
        p("s_cbranch_scc1 K2_PRRET")
        p("s_setprio 1")
        p(f"s_cmp_eq_u32 s{S_B}, 2")
        p("s_cbranch_scc1 K2_PRRET")
        p("s_setprio 0")
    p("s_branch K2_PRRET")

    p.label("K2_SIDE")
    T = 8; ST = 72; ACC = 136
    p(f"s_mov_b32 s{S_SW}, s{S_W}")
    p("v_lshlrev_b32 v2, 4, v0")
    for r in range(4): p(f"v_mov_b32 v{T+r}, 0")
    for i in range(2): p(f"ds_write_b128 v2, v[{T}:{T+3}] offset:{CNT + i*4096}")
    p("v_lshlrev_b32 v0, 4, v1")
    p(f"ds_write_b128 v0, v[{T}:{T+3}] offset:{ZERO}")
    p("v_and_b32 v2, 7, v1")
    p("v_lshlrev_b32 v2, 2, v2")
    p("v_and_b32 v3, 31, v1")
    p("v_lshlrev_b32 v3, 2, v3")
    p(f"s_lshl_b32 s10, s{S_L}, 5")
    p(f"s_add_u32 s10, s10, {GT:#x}")
    p(f"s_lshl_b32 s11, s{S_RT}, 7")
    p(f"s_add_u32 s11, s11, {GT:#x}")
    p(f"s_lshl_b32 s3, s{S_RT}, 15")
    p(f"s_lshl_b32 s12, s{S_SW}, 13")
    p("s_add_u32 s3, s3, s12")
    p(f"s_add_u32 s3, s3, {PQF:#x}")
    p("s_waitcnt lgkmcnt(0)")
    srd(p, SWS, 8, WS_SIZE)
    srd(p, SDBG, 6, 256)
    srd(p, SOUT, 4, 2048 * 1024)
    p(f"s_cmp_lt_u32 s2, 68")
    p("s_cselect_b32 s54, 1, 0")
    p(f"s_cmp_eq_u32 s{S_SW}, 0")
    p("s_cselect_b32 s54, s54, 0")
    p("s_cmp_eq_u32 s54, 0")
    p("s_cbranch_scc1 K2_NORED0")
    p("v_lshlrev_b32 v7, 3, v1")
    p("s_lshl_b32 s12, s2, 9")
    p(f"s_add_u32 s12, s12, {KVP:#x}")
    for i in range(32):
        p(f"buffer_load_dwordx2 v[{ST+2*i}:{ST+2*i+1}], v7, {W}, s12 offen")
        if i < 31: p(f"s_add_u32 s12, s12, {KVN*4}")
    p.label("K2_NORED0")
    p("s_barrier")
    p(f"buffer_load_dword v5, v2, {W}, s10 offen")
    p(f"buffer_load_dword v6, v3, {W}, s11 offen")
    for i in range(8):
        p(f"buffer_load_dwordx4 v[{T+32+4*i}:{T+32+4*i+3}], v0, {W}, s3 offen offset:{(i&3)*1024}")
        if i == 3: p("s_add_u32 s3, s3, 4096")
    p(f"s_mov_b64 s[{S_BAD}:{S_BAD+1}], 0")
    p("s_cmp_eq_u32 s54, 0")
    p("s_cbranch_scc1 K2_NORED")
    p("s_waitcnt vmcnt(10)")
    n = 32
    while n > 1:
        n //= 2
        for i in range(n):
            a, b = (2 * i, 2 * i + 1)
            p(f"v_pk_add_f32 v[{ST+2*i}:{ST+2*i+1}], v[{ST+2*a}:{ST+2*a+1}], v[{ST+2*b}:{ST+2*b+1}]")
    p(f"v_cvt_pk_bf16_f32 v{ST}, v{ST}, v{ST+1}")
    p("v_lshlrev_b32 v7, 2, v1")
    p("s_lshl_b32 s3, s2, 8")
    p(f"s_add_u32 s3, s3, {KVF:#x}")
    p(f"buffer_store_dword v{ST}, v7, {W}, s3 offen sc1")
    p("v_mov_b32 v7, 0")
    p(f"v_mov_b32 v{T}, 1")
    p("s_waitcnt vmcnt(0)")
    p("s_mov_b64 exec, 1")
    p(f"buffer_atomic_add v{T}, v7, s[{SDBG}:{SDBG+3}], 0 offen sc1")
    p("s_mov_b64 exec, -1")
    p.label("K2_NORED")
    p.stamp(2)
    def load16(sreg, dst):
        p(f"s_mov_b32 s3, s{sreg}")
        for i in range(16):
            p(f"buffer_load_dwordx4 v[{dst+4*i}:{dst+4*i+3}], v0, {W}, s3 offen offset:{(i&3)*1024}")
            if i & 3 == 3 and i < 15: p("s_add_u32 s3, s3, 4096")
    S_WA, S_WB = 49, 48
    p(f"s_lshl_b32 s{S_WA}, s{S_SUB}, 2")
    p(f"s_add_u32 s{S_WA}, s{S_WA}, s{S_SW}")
    p(f"s_lshl_b32 s{S_WA}, s{S_WA}, 15")
    p(f"s_add_u32 s{S_WA}, s{S_WA}, {WAF:#x}")
    load16(S_WA, ST)
    p(f"s_add_u32 s{S_WA}, s{S_WA}, 0x4000")
    p("v_lshrrev_b32 v7, 2, v3")
    p("v_min_u32 v7, 16, v7")
    p(f"v_lshrrev_b32 v{T}, 5, v1")
    p(f"v_lshl_add_u32 v7, v7, 1, v{T}")
    p("v_lshlrev_b32 v7, 4, v7")
    p(f"v_mov_b32 v{T+1}, 0")
    p.label("K2_POLLKV")
    p(f"buffer_load_dword v{T}, v{T+1}, s[{SDBG}:{SDBG+3}], 0 offen sc1")
    p("s_waitcnt vmcnt(0)")
    p(f"v_cmp_ne_u32 vcc, 68, v{T}")
    p("s_cbranch_vccz K2_GOTKV")
    spin(p, "K2_POLLKV", 8)
    p.label("K2_GOTKV")
    p.stamp(3)
    p(f"s_mul_i32 s3, s{S_SW}, {8*544}")
    p(f"s_add_u32 s3, s3, {KVF:#x}")
    for i in range(8):
        p(f"buffer_load_dwordx4 v[{T+4*i}:{T+4*i+3}], v7, {W}, s3 offen offset:{i*544} sc1")
    p(f"s_lshl_b32 s3, s{S_SW}, 13")
    p(f"s_add_u32 s3, s3, {OAF}")
    p("v_add_u32 v7, s3, v0")
    p(f"s_mov_b32 s11, {f2u(1e-6):#x}")
    p("v_sub_f32 v5, 1.0, v5")
    p("s_waitcnt vmcnt(0)")
    def oa_mfma(i):
        o = ACC + 16 * (i & 1)
        p(f"v_mfma_f32_32x32x16_bf16 v[{o}:{o+15}], v[{T+4*i}:{T+4*i+3}], v[{T+32+4*i}:{T+32+4*i+3}], 0")
    oa_mfma(0)
    for i in range(8):
        if i < 7: oa_mfma(i + 1)
        o = ACC + 16 * (i & 1)
        p(f"v_add_f32 v{o+8}, s11, v{o+8}")
        p(f"v_rcp_f32 v{o+8}, v{o+8}")
        p(f"v_mul_f32 v{o+8}, v6, v{o+8}")
        for j in range(8): p(f"v_mul_f32 v{o+j}, v{o+8}, v{o+j}")
        for j in range(4): p(f"v_cvt_pk_bf16_f32 v{o+12+j}, v{o+2*j}, v{o+2*j+1}")
        p(f"ds_write_b128 v7, v[{o+12}:{o+15}] offset:{i*1024}")
    p("v_lshlrev_b32 v4, 2, v1")
    p("v_mov_b32 v6, 1")
    p(f"ds_add_u32 v4, v6 offset:{OACNT}")
    load16(S_WA, T)
    p.stamp(4)
    p.label("K2_POLLOA")
    p(f"ds_read_b32 v7, v4 offset:{OACNT}")
    p("s_waitcnt lgkmcnt(0)")
    p(f"v_cmp_ne_u32 vcc, 4, v7")
    p("s_cbranch_vccz K2_GOTOA")
    spin(p, "K2_POLLOA", 2)
    p.label("K2_GOTOA")
    p.stamp(5)
    B = ACC + 16
    for half in range(2):
        src = ST if half == 0 else T
        for g4 in range(4):
            for j in range(4):
                hd = half * 16 + g4 * 4 + j
                p(f"ds_read_b128 v[{B+4*j}:{B+4*j+3}], v0 offset:{OAF + hd*1024}")
            if half == 1: p(f"s_waitcnt vmcnt({16 + 12 - 4*g4})")
            for j in range(4):
                i = g4 * 4 + j
                p(f"s_waitcnt lgkmcnt({3-j})")
                C = "0" if (half == 0 and i == 0) else f"v[{ACC}:{ACC+15}]"
                p(f"v_mfma_f32_32x32x16_bf16 v[{ACC}:{ACC+15}], v[{src+4*i}:{src+4*i+3}], v[{B+4*j}:{B+4*j+3}], {C}")
        if half == 0:
            p(f"s_lshl_b32 s{S_WB}, s{S_SW}, 14")
            p(f"s_add_u32 s{S_WB}, s{S_WB}, {WBF:#x}")
            load16(S_WB, ST)
            p(f"s_add_u32 s{S_WB}, s{S_WB}, 0x10000")
    p(f"s_lshl_b32 s3, s{S_L}, 2")
    p(f"s_add_u32 s3, s3, s{S_SW}")
    p("s_lshl_b32 s10, s3, 12")
    p(f"s_add_u32 s10, s10, {OUTA:#x}")
    for q in range(4):
        p(f"buffer_store_dwordx4 v[{ACC+4*q}:{ACC+4*q+3}], v0, {W}, s10 offen offset:{q*1024} sc1")
    p("s_and_b32 s3, s3, 15")
    p("s_lshl_b32 s3, s3, 2")
    p(f"s_lshl_b32 s10, s{S_RT}, 7")
    p("s_add_u32 s3, s3, s10")
    p(f"s_add_u32 s3, s3, {FLG:#x}")
    p("v_mov_b32 v7, 0")
    p("v_lshrrev_b32 v3, 5, v1")
    p("v_lshlrev_b32 v3, 7, v3")
    p("v_lshl_add_u32 v3, v2, 2, v3")
    p(f"v_bfe_u32 v{T}, v1, 4, 1")
    p(f"v_lshl_add_u32 v3, v{T}, 9, v3")
    p(f"v_add_u32 v3, {QL}, v3")
    p(f"s_mov_b32 s50, {cnt(8):#x}")
    p(f"s_mov_b32 s51, {(127-64) << 23:#x}")
    p(f"s_mov_b32 s52, {128 << 23:#x}")
    p("s_waitcnt vmcnt(0)")
    p("s_mov_b64 exec, 1")
    p(f"buffer_store_dword v6, v7, {W}, s3 offen sc1")
    p("s_mov_b64 exec, -1")
    for r in range(32): p(f"v_mov_b32 v{ACC+r}, 0")
    p.stamp(6)
    p("s_branch K2_BLK1")

    p.label("K2_BLK")
    load16(S_WB, ST)
    p(f"s_add_u32 s{S_WB}, s{S_WB}, 0x10000")
    p.label("K2_BLK1")
    p(f"s_and_b32 s3, s{S_B}, 3")
    p(f"s_cmp_eq_u32 s3, s{S_SW}")
    p("s_cbranch_scc0 K2_POLLF")
    p(f"s_cmp_ge_u32 s{S_B}, 6")
    p(f"s_cselect_b32 s3, 6, 0")
    p(f"s_sub_u32 s3, s{S_B}, s3")
    p("s_lshl_b32 s10, s3, 14")
    p(f"s_add_u32 s10, s10, {PART}")
    p("v_add_u32 v7, s10, v0")
    p("s_lshl_b32 m0, s3, 11")
    p.label("K2_POLL")
    p(f"ds_read_b32 v{T}, v4 offset:{CNT + 256}")
    p("s_waitcnt lgkmcnt(0)")
    p(f"v_cmp_ne_u32 vcc, s50, v{T}")
    p("s_cbranch_vccz K2_GOT")
    spin(p, "K2_POLL", 2)
    p.label("K2_GOT")
    Lr = T + 56
    for w in range(8): p(f"ds_read_addtid_b32 v{Lr+w} offset:{LPL + w*256}")
    for i in range(6): p(f"ds_read_b128 v[{T+4*i}:{T+4*i+3}], v7 offset:{i*1024}")
    p("s_waitcnt lgkmcnt(6)")
    p(f"v_pk_add_f32 v[{Lr}:{Lr+1}], v[{Lr}:{Lr+1}], v[{Lr+2}:{Lr+3}]")
    p(f"v_pk_add_f32 v[{Lr+4}:{Lr+5}], v[{Lr+4}:{Lr+5}], v[{Lr+6}:{Lr+7}]")
    for i in range(6, 14): p(f"ds_read_b128 v[{T+4*i}:{T+4*i+3}], v7 offset:{i*1024}")
    p(f"v_pk_add_f32 v[{Lr}:{Lr+1}], v[{Lr}:{Lr+1}], v[{Lr+4}:{Lr+5}]")
    p(f"v_add_f32 v6, v{Lr}, v{Lr+1}")
    p("s_waitcnt lgkmcnt(10)")
    for i in range(14, 16): p(f"ds_read_b128 v[{T+4*i}:{T+4*i+3}], v7 offset:{i*1024}")
    p(f"v_subrev_u32 v7, s51, v6")
    p(f"v_rcp_f32 v6, v6")
    p(f"v_cmp_le_u32 vcc, s52, v7")
    def padd(w):
        for j in range(4):
            p(f"v_pk_add_f32 v[{T+2*j}:{T+2*j+1}], v[{T+2*j}:{T+2*j+1}], v[{T+8*w+2*j}:{T+8*w+2*j+1}]")
    padd(1)
    p(f"s_or_b64 s[{S_BAD}:{S_BAD+1}], s[{S_BAD}:{S_BAD+1}], vcc")
    p(f"v_mul_f32 v6, v5, v6")
    for w in range(2, 8):
        p(f"s_waitcnt lgkmcnt({2*(7-w)})")
        padd(w)
    for j in range(4):
        p(f"v_pk_mul_f32 v[{T+2*j}:{T+2*j+1}], v[{T+2*j}:{T+2*j+1}], v[6:7] op_sel_hi:[1,0]")
    for j in range(4): p(f"v_cvt_pk_bf16_f32 v{T+8+j}, v{T+2*j}, v{T+2*j+1}")
    p(f"s_lshl_b32 s3, s{S_B}, 10")
    p("v_add_u32 v7, s3, v0")
    p("v_mov_b32 v6, 1")
    p(f"ds_write_b128 v7, v[{T+8}:{T+11}] offset:{QL}")
    p(f"ds_write_b32 v4, v6 offset:{FF}")
    p("s_branch K2_GOTF")
    p.label("K2_POLLF")
    p(f"ds_read_b32 v{T}, v4 offset:{FF}")
    p("s_waitcnt lgkmcnt(0)")
    p(f"v_cmp_ne_u32 vcc, 1, v{T}")
    p("s_cbranch_vccz K2_GOTF")
    spin(p, "K2_POLLF", 2)
    p.label("K2_GOTF")
    p(f"ds_read_b128 v[{T+16}:{T+19}], v3")
    p(f"ds_read_b128 v[{T+20}:{T+23}], v3 offset:256")
    p("v_add_u32 v3, 1024, v3")
    p("v_add_u32 v4, 256, v4")
    p("s_waitcnt vmcnt(0) lgkmcnt(0)")
    for ks in range(2):
        for ct in range(8):
            i = ct * 2 + ks
            a = ACC + ct * 4
            p(f"v_mfma_f32_16x16x32_bf16 v[{a}:{a+3}], v[{ST+4*i}:{ST+4*i+3}], v[{T+16+4*ks}:{T+19+4*ks}], v[{a}:{a+3}]")
    p(f"s_add_u32 s{S_B}, s{S_B}, 1")
    p(f"s_cmp_eq_u32 s{S_B}, 3")
    p("s_cbranch_scc1 K2_GETA")
    p(f"s_cmp_lt_u32 s{S_B}, 8")
    p("s_cbranch_scc1 K2_BLK")
    p.stamp(9)
    p("v_lshlrev_b32 v2, 8, v2")
    p("v_lshrrev_b32 v3, 4, v1")
    p("v_lshl_add_u32 v2, v3, 6, v2")
    p(f"s_lshl_b32 s3, s{S_L}, 13")
    p(f"s_lshl_b32 s10, s{S_SW}, 8")
    p("s_add_u32 s3, s3, s10")
    p("s_mov_b32 exec_lo, 0x00ff00ff")
    p("s_mov_b32 exec_hi, 0x00ff00ff")
    for i in range(4):
        for j in range(4):
            p(f"v_cvt_pk_bf16_f32 v{T+4*i+j}, v{ACC+8*i+2*j}, v{ACC+8*i+2*j+1}")
        p(f"buffer_store_dwordx4 v[{T+4*i}:{T+4*i+3}], v2, s[{SOUT}:{SOUT+3}], s3 offen offset:{i*16}")
    if stamps: p("s_waitcnt vmcnt(0)")
    p.stamp(10); p.stamp(11, True)
    p.dump_stamps(12, SWS, 2, S_W, STAMP2, (4, 5))
    p("s_endpgm")

    p.label("K2_GETA")
    p.stamp(7)
    p("v_lshrrev_b32 v7, 4, v1")
    p("v_lshlrev_b32 v7, 2, v7")
    p(f"s_lshl_b32 s3, s{S_RT}, 7")
    p(f"s_lshl_b32 s10, s{S_SW}, 4")
    p("s_add_u32 s3, s3, s10")
    p(f"s_add_u32 s3, s3, {FLG:#x}")
    p.label("K2_POLLA")
    p(f"buffer_load_dword v{T}, v7, {W}, s3 offen sc1")
    p("s_waitcnt vmcnt(0)")
    p(f"v_cmp_ne_u32 vcc, 1, v{T}")
    p("s_cbranch_vccz K2_GOTA")
    spin(p, "K2_POLLA", 8)
    p.label("K2_GOTA")
    p("v_lshlrev_b32 v7, 10, v7")
    p("v_lshl_add_u32 v7, v2, 2, v7")
    p(f"s_lshl_b32 s3, s{S_RT}, 2")
    p(f"s_add_u32 s3, s3, s{S_SW}")
    p("s_lshl_b32 s3, s3, 14")
    p(f"s_lshl_b32 s10, s{S_SUB}, 7")
    p("s_add_u32 s3, s3, s10")
    p(f"s_add_u32 s3, s3, {OUTA:#x}")
    for ct in range(8):
        p(f"buffer_load_dwordx4 v[{T+4*ct}:{T+4*ct+3}], v7, {W}, s3 offen offset:{ct*512} sc1")
    load16(S_WB, ST)
    p(f"s_add_u32 s{S_WB}, s{S_WB}, 0x10000")
    p("s_waitcnt vmcnt(16)")
    for i in range(16): p(f"v_pk_add_f32 v[{ACC+2*i}:{ACC+2*i+1}], v[{ACC+2*i}:{ACC+2*i+1}], v[{T+2*i}:{T+2*i+1}]")
    p.stamp(8)
    p("s_branch K2_BLK1")
    p.label("K2_END")
    p("s_endpgm")
    return p
```

```python
import re

REG = re.compile(r'^(-|abs\()?([vsa])(?:\[(\d+):(\d+)\]|(\d+))\)?$')

def parse_reg(tok):
    tok = tok.strip()
    if tok == 'vcc': return [('s', 106), ('s', 107)]
    if tok == 'exec': return [('s', 126), ('s', 127)]
    if tok == 'm0': return [('s', 124)]
    m = REG.match(tok)
    if not m: return []
    k = m.group(2)
    if m.group(3) is not None:
        return [(k, i) for i in range(int(m.group(3)), int(m.group(4)) + 1)]
    return [(k, int(m.group(5)))]

TRANS = ('v_exp_f32', 'v_log_f32', 'v_rcp_f32', 'v_rsq_f32', 'v_sqrt_f32', 'v_sin_f32', 'v_cos_f32')

def split_ops(s):
    out, depth, cur = [], 0, ''
    for ch in s:
        if ch in '[(': depth += 1
        if ch in '])': depth -= 1
        if ch == ',' and depth == 0:
            out.append(cur.strip()); cur = ''
        else:
            cur += ch
    if cur.strip(): out.append(cur.strip())
    return out

class Ins:
    def __init__(self, text):
        self.text = text
        t = text.split(';')[0].strip()
        self.is_label = t.endswith(':')
        self.is_dir = t.startswith('.')
        self.op = ''
        self.w = set(); self.r = set()
        self.kind = 'other'
        self.passes = 0
        self.srcc = set(); self.srcab = set()
        self.states = 1
        if not t or self.is_label or self.is_dir:
            self.states = 0
            return
        parts = t.split(None, 1)
        op = parts[0]; self.op = op
        rest = parts[1] if len(parts) > 1 else ''
        ops = split_ops(rest)
        if ops:
            last = ops[-1].split()
            mods = ' '.join(last[1:])
            ops[-1] = last[0] if last else ''
        else:
            mods = ''
        self.mods = mods
        R = [parse_reg(o) for o in ops]
        base = op.replace('_e32', '').replace('_e64', '')
        if op == 's_nop':
            self.states = int(ops[0], 0) + 1; self.kind = 'nop'; return
        if op.startswith('v_mfma') or op.startswith('v_smfmac'):
            self.kind = 'mfma'
            self.passes = 8 if '32x32' in op else 4
            self.w = set(R[0])
            self.srcab = set(R[1]) | set(R[2])
            if op.startswith('v_smfmac'):
                self.srcc = set(R[0]); self.srcab |= set(R[3])
            else:
                self.srcc = set(R[3])
            self.r = self.srcab | self.srcc
            return
        if op.startswith('v_'):
            self.kind = 'valu'
            self.trans = base in TRANS
            if base.startswith('v_cmp'):
                self.w = set(R[0]); self.r = set().union(*R[1:])
                if base.startswith('v_cmpx'): self.w |= set(parse_reg('exec'))
            elif base in ('v_add_co_u32', 'v_sub_co_u32', 'v_addc_co_u32', 'v_subb_co_u32'):
                self.w = set(R[0]) | set(R[1]); self.r = set().union(*R[2:])
            elif base.startswith('v_permlane') and 'swap' in base:
                self.w = set(R[0]) | set(R[1]); self.r = set(self.w)
            else:
                self.w = set(R[0]); self.r = set().union(*R[1:]) if len(R) > 1 else set()
                if base in ('v_fmac_f32', 'v_pk_fmac_f16', 'v_dot2c_f32_bf16') or 'UNUSED_PRESERVE' in mods or 'dpp' in op or 'row_' in mods or 'quad_perm' in mods:
                    self.r |= set(R[0])
            self.dpp = ('dpp' in op) or ('row_' in mods) or ('quad_perm' in mods)
            return
        if op.startswith('ds_'):
            self.kind = 'ds'
            if op.startswith('ds_read') or '_rtn' in op or op.startswith('ds_bpermute') or op.startswith('ds_permute') or op.startswith('ds_swizzle'):
                self.w = set(R[0]); self.r = set().union(set(), *R[1:])
            else:
                self.r = set().union(*R)
            self.addtid = 'addtid' in op
            return
        if op.startswith('buffer_') or op.startswith('global_'):
            self.kind = 'vmem'
            lds = ' lds' in (' ' + mods) or '_lds_' in op
            self.lds = lds
            if lds:
                self.r = set().union(*R) | set(parse_reg('m0'))
            elif '_load' in op:
                self.w = set(R[0]); self.r = set().union(*R[1:])
            elif 'atomic' in op and 'sc0' in mods:
                self.w = set(R[0]); self.r = set().union(*R)
            else:
                self.r = set().union(*R) if R else set()
                if 'store_dwordx4' in op or 'store_dwordx3' in op:
                    d = R[0] if op.startswith('buffer_') else R[1]
                    self.wide = set(d)
            return
        if op.startswith('s_'):
            self.kind = 'salu'
            if op.startswith('s_cmp') or op.startswith('s_cbranch') or op in ('s_branch', 's_waitcnt', 's_barrier', 's_endpgm', 's_setprio', 's_sleep'):
                self.r = set().union(*R) if R else set()
            else:
                self.w = set(R[0]) if R else set(); self.r = set().union(*R[1:]) if len(R) > 1 else set()
                if 'saveexec' in op: self.w |= set(parse_reg('exec'))
            return

def need(p, c):
    n = 0
    vw = {x for x in p.w if x[0] != 's'}
    sw = {x for x in p.w if x[0] == 's'}
    if p.kind == 'valu':
        if c.kind == 'mfma' and vw & c.r: n = max(n, 2)
        if c.kind == 'mfma' and (('s', 126) in p.w): n = max(n, 4)
        if c.kind == 'valu':
            if p.trans and not c.trans and vw & c.r: n = max(n, 1)
            if p.trans and c.trans and vw & c.r: n = max(n, 1)
            if c.dpp and vw & c.r: n = max(n, 2)
            if c.op.startswith('v_permlane') and vw & c.r: n = max(n, 2)
            if (c.op.startswith('v_readfirstlane') or c.op.startswith('v_readlane')) and vw & c.r: n = max(n, 1)
            if sw & c.r:
                n = max(n, 2)
                if c.op.startswith('v_readlane') or c.op.startswith('v_writelane'): n = max(n, 4)
            if ('s', 126) in p.w and (c.dpp): n = max(n, 5)
            if ('s', 126) in p.w and (c.op.startswith('v_read') or c.op.startswith('v_permlane')): n = max(n, 4)
            if ('sdwa' in p.op or 'op_sel' in p.mods) and vw & (c.r | c.w): n = max(n, 1)
        if c.kind == 'vmem' and sw & c.r: n = max(n, 5)
        if c.kind == 'salu' and sw & c.r: n = max(n, 1)
        if p.trans and c.kind in ('ds', 'vmem') and vw & c.r: n = max(n, 1)
    if p.kind == 'mfma':
        big = p.passes == 8
        if c.kind == 'mfma':
            if p.w & c.srcab: n = max(n, 12 if big else 8)
            if p.w & c.srcc:
                if not (p.w == c.srcc and p.passes == c.passes): n = max(n, 10 if big else 6)
            if p.w & c.w and not (p.w & c.srcc) and p.passes != c.passes: n = max(n, 12 if big else 8)
        elif c.kind in ('valu', 'ds', 'vmem'):
            if p.w & (c.r | c.w): n = max(n, 12 if big else 8)
            if c.kind == 'valu' and p.srcc & c.w: n = max(n, 7 if big else 3)
            if c.kind in ('ds', 'vmem') and p.srcc & c.w: n = max(n, 7 if big else 3)
    if p.kind == 'salu':
        if ('s', 124) in p.w and c.kind == 'vmem' and getattr(c, 'lds', False): n = max(n, 1)
        if ('s', 124) in p.w and c.kind == 'ds' and getattr(c, 'addtid', False): n = max(n, 1)
    if p.kind == 'vmem' and hasattr(p, 'wide'):
        if p.wide & c.w: n = max(n, 2)
    return n

def isize(l):
    t = l.split(';')[0].strip()
    if not t or t.endswith(':') or t.startswith('.'): return 0
    op = t.split()[0]
    lit = bool(re.search(r'(?<![\w\[:])(0x[0-9a-fA-F]+|\d{3,}|6[5-9]|[7-9]\d)(?![\w\]:])', t.split(None, 1)[1] if ' ' in t else ''))
    if op.startswith(('ds_', 'buffer_', 'global_', 'v_mfma', 'v_smfmac', 'v_pk_', 's_load', 's_memtime', 's_memrealtime')): return 8
    if op.startswith('v_') and (op.endswith('_e64') or op in ('v_cvt_pk_bf16_f32', 'v_lshl_add_u32', 'v_bfe_u32', 'v_max3_f32', 'v_max3_u32', 'v_mad_u32_u24', 'v_fma_f32', 'v_mul_lo_u32')): return 8
    if op in ('s_waitcnt', 's_nop', 's_barrier', 's_sleep', 's_setprio', 's_endpgm') or op.startswith(('s_branch', 's_cbranch')): return 4
    return 8 if lit else 4

class Prog:
    def __init__(self):
        self.lines = []
    def hops_begin(self, name):
        self._hop = (name, len(self.lines))
    def hops_end(self, ret, step=64):
        name, start = self._hop
        body = self.lines[start:]; del self.lines[start:]
        out = []; n = 0; acc = 0
        out += [f"{name}_H0:", f"s_cbranch_execz {name}_H1"]
        for l in body:
            sz = isize(l)
            if sz and acc + sz + 4 > step:
                n += 1; out += [f"{name}_H{n}:", f"s_cbranch_execz {name}_H{n+1}"]; acc = 0
            out.append(l); acc += sz
        for i in range(len(out) - 1, -1, -1):
            if out[i] == f"s_cbranch_execz {name}_H{n+1}":
                out[i] = f"s_cbranch_execz {ret}"; break
        self.lines += out
    def dry_run(self, name, ret):
        self("s_mov_b64 exec, 0")
        self(f"s_branch {name}_H0")
        self.label(ret)
        self("s_mov_b64 exec, -1")
    def __call__(self, text):
        for l in text.split('\n'):
            l = l.strip()
            if l: self.lines.append(l)
    def label(self, name): self.lines.append(name + ':')
    def pad(self, n):
        while n > 0:
            k = min(n, 16); self.lines.append(f's_nop {k-1}'); n -= k
    stamps = False
    mute = set()
    def stamp(self, i, real=False, force=False):
        if not self.stamps or (i in self.mute and not force): return
        self(f"{'s_memrealtime' if real else 's_memtime'} s[{70+2*i}:{71+2*i}]")
    def dump_stamps(self, n, srd, swg, swave, base, tmpv=(250, 251)):
        if not self.stamps: return
        a, d = tmpv
        self("s_waitcnt lgkmcnt(0)")
        self("s_mov_b64 exec, 1")
        self(f"s_lshl_b32 s68, s{swg}, 4")
        self(f"s_add_u32 s68, s68, s{swave}")
        self(f"s_lshl_b32 s68, s68, 6")
        self(f"s_add_u32 s68, s68, {base:#x}")
        self(f"v_mov_b32 v{a}, 0")
        for i in range(n):
            self(f"v_mov_b32 v{d}, s{70+2*i}")
            self(f"buffer_store_dword v{d}, v{a}, s[{srd}:{srd+3}], s68 offen offset:{4*i}")
            self("s_nop 1")
    def extend(self, other): self.lines += other.lines
    def finalize(self):
        out = []; hist = []
        inserted = 0
        for l in self.lines:
            ins = Ins(l)
            if ins.states == 0:
                out.append(ins); continue
            dist = 0; req = 0
            for p in reversed(hist):
                n = need(p, ins)
                if n > dist: req = max(req, n - dist)
                dist += p.states
                if dist >= 20: break
            if req:
                nop = Ins(f's_nop {req-1}'); out.append(nop); hist.append(nop); inserted += req
            out.append(ins); hist.append(ins)
            if ins.op in ('s_branch', 's_endpgm', 's_setpc_b64'):
                hist = []
            if len(hist) > 40: hist = hist[-40:]
        self.inserted = inserted
        txt = []
        for i in out:
            if i.is_label or i.is_dir: txt.append(i.text)
            else: txt.append('    ' + i.text)
        return '\n'.join(txt) + '\n'
```

```python
from asm import Prog
from common import *

K1_LDS = 131072 + 16384 + 1024
XTRA = 131072
GATE_L = 131072 + 16384

def srd(p, d, base, size):
    p(f"s_mov_b32 s{d}, s{base}")
    p(f"s_mov_b32 s{d+1}, s{base+1}")
    p(f"s_mov_b32 s{d+2}, {size:#x}")
    p(f"s_mov_b32 s{d+3}, 0x20000")

SX, SW1, SW2, SE, SWS, SG = 24, 28, 32, 36, 40, 44
S_W, S_RB, S_CB, S_ST2, S_SOX, S_SO1, S_SO2, S_MX, S_MW = 48, 49, 50, 51, 52, 53, 54, 55, 56
S_L2E, S_EPS = 58, 60
S_KS = 66
AHEAD = 2
ROT = 7
HOP = 64
ACC = 64
def acc(rt, u): return ACC + (rt * 2 + u) * 16
def xf(b, rt): return 32 + b * 16 + rt * 4
def wf(b, u): return 32 + b * 16 + 8 + u * 4

def dma_stage(slot):
    G = []
    for i in range(4):
        G.append([f"s_add_u32 m0, s{S_MX}, {slot*32768 + i*1024:#x}",
                  f"buffer_load_dwordx4 v{12+i}, s[{SX}:{SX+3}], s{S_SOX} offen lds"])
    for i in range(2):
        G.append([f"s_add_u32 m0, s{S_MW}, {slot*32768 + 16384 + i*1024:#x}",
                  f"buffer_load_dwordx4 v{16+i}, s[{SW1}:{SW1+3}], s{S_SO1} offen lds"])
    for i in range(2):
        G.append([f"s_add_u32 m0, s{S_MW}, {slot*32768 + 24576 + i*1024:#x}",
                  f"buffer_load_dwordx4 v{18+i}, s[{SW2}:{SW2+3}], s{S_SO2} offen lds"])
    G.append(ks_step())
    return G

def ks_set():
    return [f"s_lshl_b32 s{S_SOX}, s{S_KS}, 7",
            f"s_mul_i32 s{S_SO1}, s{S_KS}, {64*3072:#x}",
            f"s_mul_i32 s{S_SO2}, s{S_KS}, s{S_ST2}"]
def ks_step():
    return [f"s_add_u32 s{S_KS}, s{S_KS}, 1", f"s_and_b32 s{S_KS}, s{S_KS}, 7"] + ks_set()

def reads(s, t):
    slot = s & 3; b = t & 1
    hi = slot >> 1; so = (slot & 1) * 32768
    L = []
    for rt in range(2):
        L.append(f"ds_read_b128 v[{xf(b,rt)}:{xf(b,rt)+3}], v{2 + hi*4 + t} offset:{so + rt*4096}")
    for u in range(2):
        for q in range(2):
            L.append(f"ds_read_b64_tr_b16 v[{wf(b,u)+2*q}:{wf(b,u)+2*q+1}], v{10+hi} offset:{so + 16384 + u*8192 + (16*t + 4*q)*128}")
    return L

def mfmas(s, t, ct_form):
    b = t & 1
    L = []
    for rt in range(2):
        for u in range(2):
            a = acc(rt, u)
            X = f"v[{xf(b,rt)}:{xf(b,rt)+3}]"; W = f"v[{wf(b,u)}:{wf(b,u)+3}]"
            C = f"v[{a}:{a+15}]"
            if s == 0 and t == 0: C = "1.0" if u == 0 else "0"
            A, B = (W, X) if ct_form else (X, W)
            L.append(f"v_mfma_f32_32x32x16_bf16 v[{a}:{a+15}], {A}, {B}, {C}")
    return L

def mainloop(p, ct_form):
    def rd(s, t):
        R = reads(s, t)
        return [[R[0], R[2]], [R[3], R[4]], [R[5], R[1]]]
    p.stamp(2)
    p("s_barrier")
    p.stamp(3)
    for g in rd(0, 0):
        for l in g: p(l)
    for s in range(8):
        for t in range(4):
            M = mfmas(s, t, ct_form)
            last = (s == 7 and t == 3)
            nx = None if last else (rd(s, t + 1) if t < 3 else rd(s + 1, 0))
            if t < 3:
                p("s_waitcnt lgkmcnt(3)"); p(M[0])
                for l in nx[0]: p(l)
                p("s_waitcnt lgkmcnt(3)"); p(M[1])
                for l in nx[1]: p(l)
                p("s_waitcnt lgkmcnt(4)"); p(M[2])
                for l in nx[2]: p(l)
                p(M[3])
            else:
                p("s_waitcnt lgkmcnt(3)"); p(M[0])
                p("s_waitcnt lgkmcnt(0)")
                if not last:
                    p("s_barrier")
                    if s in (0, 3, 6): p.stamp(4 + s // 3)
                p(M[1])
                if nx:
                    for l in nx[0]: p(l)
                p(M[2])
                if nx:
                    for l in nx[1]: p(l)
                p(M[3])
                if nx:
                    for l in nx[2]: p(l)

def loader(p):
    def stage():
        for i in range(4):
            p(f"s_add_u32 m0, s{S_MX}, {i*1024:#x}")
            p(f"buffer_load_dwordx4 v{12+i}, s[{SX}:{SX+3}], s{S_SOX} offen lds")
        for i in range(2):
            p(f"s_add_u32 m0, s{S_MW}, {16384 + i*1024:#x}")
            p(f"buffer_load_dwordx4 v{16+i}, s[{SW1}:{SW1+3}], s{S_SO1} offen lds")
        for i in range(2):
            p(f"s_add_u32 m0, s{S_MW}, {24576 + i*1024:#x}")
            p(f"buffer_load_dwordx4 v{18+i}, s[{SW2}:{SW2+3}], s{S_SO2} offen lds")
    p("s_mov_b32 s64, 0")
    p.label("K1_LDL")
    stage()
    for l in ks_step(): p(l)
    for r in (S_MX, S_MW):
        p(f"s_add_u32 s{r}, s{r}, 0x8000")
        p(f"s_and_b32 s{r}, s{r}, 0x1ffff")
    p("s_add_u32 s64, s64, 1")
    p("s_cmp_eq_u32 s64, 1")
    p("s_cbranch_scc1 K1_LDL")
    if AHEAD == 3:
        p("s_cmp_eq_u32 s64, 3")
        p("s_cbranch_scc1 K1_LDL")
        p("s_cmp_eq_u32 s64, 2")
        p("s_cbranch_scc0 K1_LDW")
        p("s_waitcnt vmcnt(8)")
        p.label("K1_LDW")
    p(f"s_waitcnt vmcnt({8*(AHEAD-1)})")
    p("s_barrier")
    p("s_cmp_lt_u32 s64, 8")
    p("s_cbranch_scc1 K1_LDL")
    for k in range(AHEAD - 2, -1, -1):
        p(f"s_waitcnt vmcnt({8*k})")
        p("s_barrier")
    p("s_endpgm")

def phi_half(p, b, F, T, hooks=()):
    hooks = list(hooks)
    for j in range(4):
        p(f"v_pk_fma_f32 v[{T+2*j}:{T+2*j+1}], v[{b+2*j}:{b+2*j+1}], s[{S_L2E}:{S_L2E+1}], s[{S_L2E}:{S_L2E+1}] neg_lo:[0,0,1] neg_hi:[0,0,1]")
    for j in range(8):
        p(f"v_exp_f32_e64 v{T+j}, v{T+j} clamp")
        if j in (0, 7) and hooks: p(hooks.pop(0))
    for j in range(8):
        p(f"v_max_f32 v{T+j}, v{T+j}, v{b+j}")
    for j in range(4):
        p(f"v_pk_add_f32 v[{T+2*j}:{T+2*j+1}], v[{T+2*j}:{T+2*j+1}], s[{S_EPS}:{S_EPS+1}]")
    for j in range(4):
        p(f"v_cvt_pk_bf16_f32 v{F+j}, v{T+2*j}, v{T+2*j+1}")
    assert not hooks

def pack(p, a, F):
    for j in range(8):
        p(f"v_cvt_pk_bf16_f32 v{F+j}, v{a+2*j}, v{a+2*j+1}")

def gen_k1(name, st="", stamps=False):
    p = Prog()
    p.stamps = stamps
    p.label(name)
    p.stamp(0, True); p.stamp(1)
    p("s_cmp_ge_u32 s2, 256")
    p("s_cbranch_scc1 K1_END")
    p("s_load_dwordx16 s[4:19], s[0:1], 0")
    p("s_load_dwordx2 s[20:21], s[0:1], 64")
    p("s_load_dwordx2 s[22:23], s[0:1], 88")
    p("v_lshrrev_b32 v21, 6, v0")
    p("v_and_b32 v1, 63, v0")
    p(f"v_readfirstlane_b32 s{S_W}, v21")
    p("s_bfe_u32 s3, s2, 0x20003")
    p("s_lshr_b32 s61, s2, 5")
    p(f"s_and_b32 s{S_RB}, s2, 6")
    p(f"s_lshl_b32 s{S_RB}, s{S_RB}, 1")
    p(f"s_add_u32 s{S_RB}, s{S_RB}, s3")
    p("s_and_b32 s57, s61, 1")
    p(f"s_and_b32 s{S_CB}, s2, 1")
    p(f"s_lshl_b32 s{S_CB}, s{S_CB}, 2")
    p("s_lshr_b32 s60, s61, 1")
    p(f"s_add_u32 s{S_CB}, s{S_CB}, s60")
    p(f"s_lshl_b32 s{S_KS}, s3, 1")
    p(f"s_add_u32 s{S_KS}, s{S_KS}, s61")
    p("s_bfe_u32 s3, s2, 0x10001")
    p(f"s_add_u32 s{S_KS}, s{S_KS}, s3")
    p(f"s_and_b32 s{S_KS}, s{S_KS}, {ROT}")
    p(f"s_cmp_ge_u32 s{S_W}, 4")
    p("s_cbranch_scc1 K1_NOTLD")
    p("v_lshrrev_b32 v20, 3, v1")
    p("v_and_b32 v21, 7, v1")
    p("v_lshrrev_b32 v22, 4, v1")
    p("v_xor_b32 v23, v21, v22")
    p("v_lshlrev_b32 v23, 4, v23")
    p("v_lshl_add_u32 v23, v20, 10, v23")
    p(f"s_lshl_b32 s3, s{S_RB}, 17")
    p(f"s_lshl_b32 s{S_MX}, s{S_W}, 15")
    p(f"s_add_u32 s3, s3, s{S_MX}")
    p("v_add_u32 v12, s3, v23")
    p("v_xor_b32 v13, 64, v12")
    p("v_add_u32 v13, 0x2000, v13")
    p("v_add_u32 v14, 0x4000, v12")
    p("v_add_u32 v15, 0x4000, v13")
    p("v_and_b32 v22, 1, v22")
    p("v_lshlrev_b32 v22, 2, v22")
    p("v_xor_b32 v21, v21, v22")
    p("v_lshlrev_b32 v21, 4, v21")
    p(f"s_lshl_b32 s3, s{S_W}, 4")
    p("v_add_u32 v20, s3, v20")
    p(f"s_lshl_b32 s3, s{S_CB}, 7")
    p("v_add_u32 v21, s3, v21")
    p("s_cmp_eq_u32 s57, 0")
    p("s_cselect_b32 s3, 0, 1024")
    p("s_cselect_b32 s61, 0, 2048")
    p("s_movk_i32 s60, 3072")
    p(f"s_cselect_b32 s{S_ST2}, 1024, s60")
    p("v_mad_u32_u24 v16, v20, s60, v21")
    p("v_add_u32 v16, s3, v16")
    p(f"v_add_u32 v17, {8*3072}, v16")
    p(f"v_mad_u32_u24 v18, v20, s{S_ST2}, v21")
    p("v_add_u32 v18, s61, v18")
    p(f"s_lshl_b32 s3, s{S_ST2}, 3")
    p("v_add_u32 v19, s3, v18")
    p(f"s_lshl_b32 s{S_ST2}, s{S_ST2}, 6")
    p(f"s_lshl_b32 s{S_MX}, s{S_W}, 12")
    p(f"s_lshl_b32 s{S_MW}, s{S_W}, 11")
    for l in ks_set(): p(l)
    p(f"s_mov_b32 s{SX+2}, {2048*1024:#x}")
    p(f"s_mov_b32 s{SX+3}, 0x20000")
    p(f"s_mov_b32 s{SW1+2}, {512*3072:#x}")
    p(f"s_mov_b32 s{SW1+3}, 0x20000")
    p("s_cmp_eq_u32 s57, 0")
    p(f"s_cselect_b32 s{SW2+2}, {512*1024:#x}, s{SW1+2}")
    p(f"s_mov_b32 s{SW2+3}, 0x20000")
    p("s_waitcnt lgkmcnt(0)")
    p(f"s_mov_b64 s[{SX}:{SX+1}], s[4:5]")
    p(f"s_mov_b64 s[{SW1}:{SW1+1}], s[6:7]")
    p(f"s_cselect_b64 s[{SW2}:{SW2+1}], s[12:13], s[6:7]")
    loader(p)
    p.label("K1_NOTLD")
    p("s_getpc_b64 s[62:63]")
    p("v_lshlrev_b32 v22, 4, v0")
    p("v_subrev_u32 v22, 4096, v22")
    p("global_load_dwordx4 v[128:131], v22, s[62:63]")
    p("v_add_u32 v23, 7168, v22")
    p("global_load_dwordx4 v[132:135], v23, s[62:63]")
    p(f"s_sub_u32 s{S_W}, s{S_W}, 4")
    p(f"s_cmp_ge_u32 s{S_W}, 4")
    p("s_cbranch_scc1 K1_AUX")
    p.stamp(11)
    p("s_waitcnt lgkmcnt(0)")
    p.stamp(12)
    srd(p, SWS, 22, WS_SIZE)
    p("v_and_b32 v20, 31, v1")
    p("v_lshrrev_b32 v21, 5, v1")
    p("v_bfe_u32 v22, v1, 1, 3")
    p("v_xor_b32 v22, v22, v21")
    p("v_lshlrev_b32 v22, 4, v22")
    p("v_lshl_add_u32 v22, v20, 7, v22")
    p(f"s_lshr_b32 s3, s{S_W}, 1")
    p("s_lshl_b32 s3, s3, 13")
    p("v_add_u32 v2, s3, v22")
    for t in range(1, 4): p(f"v_xor_b32 v{2+t}, {t*32}, v2")
    for t in range(4): p(f"v_add_u32 v{6+t}, 0x10000, v{2+t}")
    p("v_bfe_u32 v22, v1, 2, 2")
    p("v_lshl_add_u32 v23, v21, 3, v22")
    p("v_lshlrev_b32 v23, 7, v23")
    p("v_bfe_u32 v24, v1, 4, 1")
    p("v_lshlrev_b32 v24, 1, v24")
    p("v_bfe_u32 v25, v1, 1, 1")
    p("v_or_b32 v24, v24, v25")
    p(f"s_and_b32 s3, s{S_W}, 1")
    p("s_lshl_b32 s3, s3, 2")
    p("v_or_b32 v24, s3, v24")
    p("v_bfe_u32 v25, v1, 3, 1")
    p("v_lshlrev_b32 v25, 2, v25")
    p("v_xor_b32 v24, v24, v25")
    p("v_lshl_add_u32 v23, v24, 4, v23")
    p("v_and_b32 v25, 1, v1")
    p("v_lshl_add_u32 v10, v25, 3, v23")
    p("v_add_u32 v11, 0x10000, v10")
    p(f"s_mov_b32 s{S_L2E}, {f2u(LOG2E):#x}")
    p(f"s_mov_b32 s{S_L2E+1}, {f2u(LOG2E):#x}")
    p(f"s_mov_b32 s{S_EPS}, {f2u(1e-6):#x}")
    p(f"s_mov_b32 s{S_EPS+1}, {f2u(1e-6):#x}")
    p("s_cmp_eq_u32 s57, 0")
    p("s_cbranch_scc0 K1_KV")
    p(f"s_lshl_b32 s3, s{S_RB}, 2")
    p(f"s_and_b32 s62, s{S_W}, 2")
    p("s_add_u32 s3, s3, s62")
    p("s_lshl_b32 s3, s3, 5")
    p(f"s_lshl_b32 s62, s{S_CB}, 2")
    p("s_add_u32 s3, s3, s62")
    p(f"s_and_b32 s62, s{S_W}, 1")
    p("s_lshl_b32 s62, s62, 1")
    p("s_add_u32 s3, s3, s62")
    p("s_lshl_b32 s3, s3, 10")
    p("v_lshl_add_u32 v26, v1, 4, s3")
    p(f"s_mov_b32 s62, {QF + 32768:#x}")
    p(f"s_mov_b32 s63, {PQF:#x}")
    p(f"s_mov_b32 s64, {PQF + 32768:#x}")
    p("s_waitcnt vmcnt(0)")
    mainloop(p, True)
    p.stamp(7)
    F = 32
    assert QF == 0
    def qst(rt, e): return f"buffer_store_dwordx4 v[{F+rt*8+4*e}:{F+rt*8+4*e+3}], v26, s[{SWS}:{SWS+3}], {'0' if rt == 0 else 's62'} offen offset:{e*1024} {st}"
    def pst(rt, e): return f"buffer_store_dwordx4 v[{48+rt*8+4*e}:{48+rt*8+4*e+3}], v26, s[{SWS}:{SWS+3}], s{63+rt} offen offset:{e*1024} {st}"
    phi_half(p, acc(0, 0), 48, 128)
    pack(p, acc(0, 1), F)
    phi_half(p, acc(0, 0) + 8, 52, 128, [pst(0, 0), qst(0, 0)])
    pack(p, acc(1, 1), F + 8)
    p(qst(0, 1))
    phi_half(p, acc(1, 0), 56, 128, [pst(0, 1), qst(1, 0)])
    phi_half(p, acc(1, 0) + 8, 60, 128, [pst(1, 0), qst(1, 1)])
    p(pst(1, 1))
    p.stamp(8)
    if stamps: p("s_waitcnt vmcnt(0)")
    p.stamp(9); p.stamp(10, True)
    p.dump_stamps(13, SWS, 2, S_W, STAMP1, (4, 5))
    p("s_endpgm")
    p.label("K1_KV")
    p(f"s_lshl_b32 s3, s{S_RB}, 1")
    p(f"s_lshr_b32 s62, s{S_W}, 1")
    p("s_add_u32 s3, s3, s62")
    p(f"s_mul_i32 s3, s3, {KVN*4}")
    p(f"s_lshl_b32 s62, s{S_CB}, 1")
    p(f"s_and_b32 s63, s{S_W}, 1")
    p("s_add_u32 s62, s62, s63")
    p(f"s_mul_i32 s62, s62, {2*1088}")
    p("s_add_u32 s3, s3, s62")
    p(f"s_add_u32 s3, s3, {KVP:#x}")
    p("v_and_b32 v22, 15, v1")
    p("v_lshl_add_u32 v22, v22, 1, v21")
    p("v_lshl_add_u32 v26, v22, 5, s3")
    p("v_lshl_add_u32 v27, v21, 5, s3")
    for j in range(4): p(f"v_mov_b32 v{28+j}, 0x3f803f80")
    p("s_waitcnt vmcnt(0)")
    mainloop(p, False)
    p.stamp(7)
    F = 32
    KVA, ZA = 136, 152
    def kvm(i):
        A = f"v[{48+4*i}:{48+4*i+3}]"; B = f"v[{F+4*i}:{F+4*i+3}]"
        c1 = "0" if i == 0 else f"v[{KVA}:{KVA+15}]"; c2 = "0" if i == 0 else f"v[{ZA}:{ZA+15}]"
        return [f"v_mfma_f32_32x32x16_bf16 v[{KVA}:{KVA+15}], {A}, {B}, {c1}",
                f"v_mfma_f32_32x32x16_bf16 v[{ZA}:{ZA+15}], {A}, v[28:31], {c2}"]
    phi_half(p, acc(0, 0), 48, 128)
    pack(p, acc(0, 1), F)
    phi_half(p, acc(0, 0) + 8, 52, 128, kvm(0))
    pack(p, acc(1, 1), F + 8)
    phi_half(p, acc(1, 0), 56, 128, kvm(1))
    phi_half(p, acc(1, 0) + 8, 60, 128, kvm(2))
    for l in kvm(3): p(l)
    p("s_mov_b32 exec_lo, 0x0000ffff")
    p("s_mov_b32 exec_hi, 0x0000ffff")
    for q in range(2):
        p(f"buffer_store_dwordx4 v[{KVA+4*q}:{KVA+4*q+3}], v26, s[{SWS}:{SWS+3}], 0 offen offset:{q*16} {st}")
    p("s_mov_b32 exec_lo, 0xffff0000")
    p("s_mov_b32 exec_hi, 0xffff0000")
    for q in range(2):
        p(f"buffer_store_dwordx4 v[{KVA+8+4*q}:{KVA+8+4*q+3}], v26, s[{SWS}:{SWS+3}], 0 offen offset:{1088+q*16} {st}")
    p("s_mov_b32 exec_lo, 1")
    p("s_mov_b32 exec_hi, 1")
    for e in range(2):
        for q in range(2):
            p(f"buffer_store_dwordx4 v[{ZA+8*e+4*q}:{ZA+8*e+4*q+3}], v27, s[{SWS}:{SWS+3}], 0 offen offset:{1024+e*1088+q*16} {st}")
    p.stamp(8)
    if stamps: p("s_waitcnt vmcnt(0)")
    p.stamp(9); p.stamp(10, True)
    p.dump_stamps(13, SWS, 2, S_W, STAMP1, (4, 5))
    p("s_endpgm")
    p.label("K1_AUX")
    p("v_lshlrev_b32 v12, 4, v1")
    p("v_bfe_u32 v20, v1, 2, 2")
    p("v_and_b32 v21, 3, v1")
    p("v_lshrrev_b32 v22, 4, v1")
    p("s_getpc_b64 s[62:63]")
    p.label("K1_PC2")
    p("s_add_u32 s62, s62, attn_kernel-K1_PC2")
    p("s_addc_u32 s63, s63, 0")
    p("s_bfe_u32 s3, s2, 0x40003")
    p("s_lshl_b32 s3, s3, 10")
    p("v_add_u32 v23, s3, v12")
    p("global_load_dwordx4 v[136:139], v23, s[62:63]")
    p("s_waitcnt lgkmcnt(0)")
    srd(p, SWS, 22, WS_SIZE)
    p("s_cmp_eq_u32 s57, 0")
    p("s_cbranch_scc0 K1_AUXT")
    p("s_setprio 1")
    p(f"s_sub_u32 s{S_W}, s{S_W}, 4")
    p(f"s_cmp_lt_u32 s{S_CB}, 4")
    p(f"s_cselect_b64 s[{SE}:{SE+1}], s[14:15], s[16:17]")
    p(f"s_mov_b32 s{SE+2}, 0x4000")
    p(f"s_mov_b32 s{SE+3}, 0x20000")
    srd(p, SG, 20, 1024)
    p(f"s_lshr_b32 s63, s{S_CB}, 2")
    p(f"s_cmp_eq_u32 s{S_W}, 2")
    p(f"s_cselect_b32 s63, s63, s{S_W}")
    p("s_cselect_b32 s65, 2, 0")
    p("s_cbranch_scc1 K1_AUXG")
    p(f"s_lshl_b32 s3, s{S_W}, 13")
    p(f"s_add_u32 m0, s3, {XTRA:#x}")
    for i in range(2):
        for j in range(4):
            p(f"buffer_load_dwordx4 v12, s[{SE}:{SE+3}], s3 offen offset:{j*1024} lds")
        if i < 1:
            p("s_add_u32 m0, m0, 4096")
            p("s_add_u32 s3, s3, 4096")
    p(f"s_lshr_b32 s65, s{S_CB}, 2")
    p("s_branch K1_AUXS")
    p.label("K1_AUXG")
    p(f"s_mov_b32 m0, {GATE_L:#x}")
    p("s_nop 0")
    p(f"buffer_load_dwordx4 v12, s[{SG}:{SG+3}], 0 offen lds")
    p.label("K1_AUXS")
    p(f"s_and_b32 s62, s{S_CB}, 3")
    p("s_lshl_b32 s62, s62, 1")
    p("s_add_u32 s62, s62, s63")
    p("v_and_b32 v23, 15, v1")
    p("v_bfe_u32 v24, v1, 1, 3")
    p("v_xor_b32 v24, v24, v22")
    p("v_lshlrev_b32 v24, 4, v24")
    p("v_lshl_add_u32 v24, v23, 7, v24")
    p("s_lshl_b32 s3, s62, 11")
    p("v_add_u32 v2, s3, v24")
    p("v_xor_b32 v3, 64, v2")
    p("v_lshl_add_u32 v6, v22, 3, v20")
    p("v_lshlrev_b32 v6, 5, v6")
    p("v_lshl_add_u32 v6, v21, 3, v6")
    p(f"v_add_u32 v8, {XTRA:#x}, v6")
    p("v_lshlrev_b32 v9, 4, v22")
    p(f"v_add_u32 v9, {GATE_L:#x}, v9")
    for j in range(4): p(f"v_mov_b32 v{64+j}, 0")
    p("s_mov_b32 s64, 0")
    p("s_barrier")
    p("s_waitcnt vmcnt(0)")
    p.label("K1_AUXL")
    p(f"s_lshl_b32 s3, s{S_KS}, 11")
    p("v_add_u32 v6, s3, v8")
    p(f"s_lshl_b32 s3, s{S_KS}, 7")
    p("v_add_u32 v7, s3, v9")
    p(f"s_add_u32 s{S_KS}, s{S_KS}, 1")
    p(f"s_and_b32 s{S_KS}, s{S_KS}, 7")
    p("s_cmp_eq_u32 s64, 7")
    p("s_cbranch_scc1 K1_AUXN")
    p("s_barrier")
    p.label("K1_AUXN")
    p("ds_read_b128 v[32:35], v2")
    p("ds_read_b128 v[36:39], v3")
    p("s_cmp_eq_u32 s65, 2")
    p("s_cbranch_scc1 K1_AUXR")
    for u in range(2):
        p(f"ds_read_b64_tr_b16 v[{40+4*u}:{41+4*u}], v6 offset:{u*1024}")
        p(f"ds_read_b64_tr_b16 v[{42+4*u}:{43+4*u}], v6 offset:{u*1024+128}")
    p("s_branch K1_AUXM")
    p.label("K1_AUXR")
    for u in range(2): p(f"ds_read_b128 v[{40+4*u}:{43+4*u}], v7 offset:{u*64}")
    p.label("K1_AUXM")
    for r in (2, 3):
        p(f"v_add_u32 v{r}, 0x8000, v{r}")
        p(f"v_and_b32 v{r}, 0x1ffff, v{r}")
    p("s_add_u32 s64, s64, 1")
    p("s_waitcnt lgkmcnt(0)")
    p("s_cmp_eq_u32 s65, 1")
    p("s_cbranch_scc1 K1_AUXB")
    for u in range(2):
        p(f"v_mfma_f32_16x16x32_bf16 v[64:67], v[{40+4*u}:{43+4*u}], v[{32+4*u}:{35+4*u}], v[64:67]")
    p("s_branch K1_AUXC")
    p.label("K1_AUXB")
    for u in range(2):
        p(f"v_mfma_f32_16x16x32_bf16 v[64:67], v[{32+4*u}:{35+4*u}], v[{40+4*u}:{43+4*u}], v[64:67]")
    p.label("K1_AUXC")
    p("s_cmp_lt_u32 s64, 8")
    p("s_cbranch_scc1 K1_AUXL")
    p(f"s_lshl_b32 s3, s{S_RB}, 3")
    p("s_add_u32 s62, s62, s3")
    p("s_lshr_b32 s3, s62, 1")
    p("s_lshl_b32 s3, s3, 10")
    p("s_and_b32 s63, s62, 1")
    p.pad(4)
    p("s_cmp_eq_u32 s65, 1")
    p("s_cbranch_scc1 K1_AUXV")
    p("s_cmp_eq_u32 s65, 0")
    p("s_cbranch_scc1 K1_AUXK")
    p(f"v_mul_f32 v64, {f2u(-LOG2E):#x}, v64")
    p("v_exp_f32 v64, v64")
    p("v_add_f32 v64, 1.0, v64")
    p("v_rcp_f32 v64, v64")
    p("s_lshl_b32 s3, s62, 6")
    p(f"s_add_u32 s3, s3, {GT:#x}")
    p("v_lshlrev_b32 v8, 2, v1")
    p("s_mov_b64 exec, 0xffff")
    p(f"buffer_store_dword v64, v8, s[{SWS}:{SWS+3}], s3 offen {st}")
    p("s_endpgm")
    p.label("K1_AUXK")
    c = 0.25 * LOG2E
    for j in range(4): p(f"v_mul_f32 v{64+j}, {f2u(c):#x}, v{64+j}")
    for j in range(2): p(f"v_cvt_pk_bf16_f32 v{76+j}, v{64+2*j}, v{65+2*j}")
    p("v_and_b32 v24, 1, v22")
    p("v_lshl_add_u32 v24, v24, 5, v23")
    p("v_lshlrev_b32 v24, 4, v24")
    p("v_lshrrev_b32 v25, 1, v22")
    p("v_lshl_add_u32 v24, v25, 3, v24")
    p("s_lshl_b32 s63, s63, 8")
    p("s_add_u32 s3, s3, s63")
    p(f"s_add_u32 s3, s3, {KF:#x}")
    p(f"buffer_store_dwordx2 v[76:77], v24, s[{SWS}:{SWS+3}], s3 offen {st}")
    p("s_endpgm")
    p.label("K1_AUXV")
    for j in range(2): p(f"v_cvt_pk_bf16_f32 v{76+j}, v{64+2*j}, v{65+2*j}")
    p("v_lshrrev_b32 v24, 1, v22")
    p("v_lshl_add_u32 v24, v24, 4, v23")
    p("v_lshlrev_b32 v24, 4, v24")
    p("v_and_b32 v25, 1, v22")
    p("v_lshl_add_u32 v24, v25, 3, v24")
    p("s_lshl_b32 s63, s63, 9")
    p("s_add_u32 s3, s3, s63")
    p(f"s_add_u32 s3, s3, {VF:#x}")
    p(f"buffer_store_dwordx2 v[76:77], v24, s[{SWS}:{SWS+3}], s3 offen {st}")
    p("s_endpgm")
    p.label("K1_AUXT")
    p(f"s_cmp_eq_u32 s{S_W}, 4")
    p("s_cbranch_scc0 K1_END")
    p(f"s_lshl_b32 s62, s{S_RB}, 3")
    p(f"s_add_u32 s62, s62, s{S_CB}")
    p("s_cmp_lt_u32 s62, 64")
    p(f"s_cselect_b32 s{SE}, s18, s8")
    p(f"s_cselect_b32 s{SE+1}, s19, s9")
    p(f"s_mov_b32 s{SE+2}, 0x80000")
    p(f"s_mov_b32 s{SE+3}, 0x20000")
    p("s_bfe_u32 s63, s62, 0x40002")
    p("s_and_b32 s64, s62, 3")
    p("s_lshl_b32 s3, s63, 15")
    p("s_lshl_b32 s65, s64, 8")
    p("s_add_u32 s3, s3, s65")
    p("v_and_b32 v23, 15, v1")
    p("v_lshlrev_b32 v23, 4, v23")
    p("v_lshl_add_u32 v23, v22, 10, v23")
    p(f"s_mov_b32 m0, {XTRA:#x}")
    p("s_barrier")
    p("s_barrier")
    for i in range(8):
        p(f"buffer_load_dwordx4 v23, s[{SE}:{SE+3}], s3 offen lds")
        if i < 7:
            p("s_add_u32 m0, m0, 1024")
            p("s_add_u32 s3, s3, 4096")
    p("v_mov_b32 v30, 0")
    p("v_lshlrev_b32 v8, 2, v1")
    p("s_lshl_b32 s3, s62, 6")
    p(f"s_add_u32 s3, s3, {FLG:#x}")
    p("s_mov_b64 exec, 0xffff")
    p(f"buffer_store_dword v30, v8, s[{SWS}:{SWS+3}], s3 offen")
    p("s_mov_b64 exec, -1")
    p("v_mov_b32 v31, -1")
    p("s_lshl_b32 s3, s62, 8")
    p(f"s_add_u32 s3, s3, {KVF:#x}")
    p(f"buffer_store_dword v31, v8, s[{SWS}:{SWS+3}], s3 offen")
    p("s_cmp_lt_u32 s62, 64")
    p("s_cbranch_scc0 K1_AUXTA")
    p("v_lshrrev_b32 v24, 1, v22")
    p("v_lshlrev_b32 v24, 4, v24")
    p("v_and_b32 v25, 1, v22")
    p("v_lshl_add_u32 v24, v25, 2, v24")
    p("v_add_u32 v24, v24, v20")
    p("v_lshlrev_b32 v24, 8, v24")
    p("v_lshl_add_u32 v24, v21, 4, v24")
    p(f"v_add_u32 v24, {XTRA:#x}, v24")
    p("s_lshr_b32 s3, s63, 1")
    p("s_lshl_b32 s3, s3, 2")
    p("s_add_u32 s3, s3, s64")
    p("s_lshl_b32 s3, s3, 14")
    p("s_and_b32 s65, s63, 1")
    p("s_lshl_b32 s65, s65, 10")
    p("s_add_u32 s3, s3, s65")
    p(f"s_add_u32 s3, s3, {WBF:#x}")
    for _ in range(6): p("s_barrier")
    p("s_waitcnt vmcnt(0)")
    for ct in range(8):
        p(f"ds_read_b64_tr_b16 v[{32+4*ct}:{33+4*ct}], v24 offset:{(ct>>1)*64 + (ct&1)*8}")
        p(f"ds_read_b64_tr_b16 v[{34+4*ct}:{35+4*ct}], v24 offset:{(ct>>1)*64 + (ct&1)*8 + 2048}")
    p("s_waitcnt lgkmcnt(0)")
    for ct in range(8):
        p(f"buffer_store_dwordx4 v[{32+4*ct}:{35+4*ct}], v12, s[{SWS}:{SWS+3}], s3 offen offset:{(ct&1)*2048} sc1")
        if ct & 1 and ct < 7: p("s_add_u32 s3, s3, 4096")
    p("s_endpgm")
    p.label("K1_AUXTA")
    p("v_lshrrev_b32 v24, 1, v22")
    p("v_lshl_add_u32 v24, v24, 2, v20")
    p("v_lshlrev_b32 v24, 8, v24")
    p("v_and_b32 v25, 1, v22")
    p("v_lshl_add_u32 v24, v25, 5, v24")
    p("v_lshl_add_u32 v24, v21, 3, v24")
    p(f"v_add_u32 v24, {XTRA:#x}, v24")
    p("s_lshl_b32 s3, s64, 17")
    p("s_lshl_b32 s65, s63, 11")
    p("s_add_u32 s3, s3, s65")
    p(f"s_add_u32 s3, s3, {WAF:#x}")
    for _ in range(6): p("s_barrier")
    p("s_waitcnt vmcnt(0)")
    for sw in range(4):
        for hd in range(2):
            b = 32 + 8 * sw + 4 * hd
            p(f"ds_read_b64_tr_b16 v[{b}:{b+1}], v24 offset:{sw*64 + hd*4096}")
            p(f"ds_read_b64_tr_b16 v[{b+2}:{b+3}], v24 offset:{sw*64 + hd*4096 + 2048}")
    p("s_waitcnt lgkmcnt(0)")
    for sw in range(4):
        for hd in range(2):
            b = 32 + 8 * sw + 4 * hd
            p(f"buffer_store_dwordx4 v[{b}:{b+3}], v12, s[{SWS}:{SWS+3}], s3 offen offset:{hd*1024} sc1")
        if sw < 3: p("s_add_u32 s3, s3, 0x8000")
    p.label("K1_END")
    p("s_endpgm")
    return p
```

```python
from asm import Prog
from common import *
from k1 import srd

NOTES = """
Two launches.  proj_kernel: all input projections (bf16 MFMA GEMM, LDS-DMA ring), phi(), partial kv/z sums,
gate, and re-layout of both output-projection weights into MFMA fragment order (all into d_ws).
attn_kernel: one workgroup per 8 rows x 32 heads.  Waves 4-11 keep a 256-key slice of K/V in registers and
stream the 8 query blocks (S = K Q^T by MFMA, v_exp_f32, P.V and the row sum by sparse MFMA);
waves 0-3 reduce/normalise, run both output projections and write d_out.
Softmax shift: the first pass uses the stand-in shift 0; every row sum l is checked at run time to lie in
[2^-80, 2^100) (no overflow, no loss by underflow); if any row of the workgroup fails, the workgroup
recomputes its rows with the true row max subtracted (labels K2_SLOWA / K2_SLOWS).
"""

LPL = 0
QL = 12288
OAF = QL + 9 * 1024
MXT = OAF
CNT = OAF + 32768
FF = CNT + 8 * 256
OACNT = FF + 8 * 256
LDI = OACNT + 256
REDO = LDI + 256
ZEND = CNT + 8192
assert REDO + 256 <= ZEND
ZERO = ZEND
PART = ZERO + 1024
PS = 16384
K2_LDS = PART + 6 * PS
assert K2_LDS <= 163840 and ZEND < 65536
IDX = 0xdddd
HOP = 64
ZOFF = ZERO - IDX
def cnt(n): return (IDX * n) & 0xffffffff

SWS, SOUT = 24, 32
S_W, S_L, S_RT, S_SUB, S_B, S_SW, S_BAD = 40, 41, 42, 43, 44, 45, 46
S_QO, S_MODE = 52, 56
W = f"s[{SWS}:{SWS+3}]"

Q, K0, V0, S0, O0 = 4, 8, 40, 104, 136
def Kf(t): return f"v[{K0+4*t}:{K0+4*t+3}]"
def Vf(t, s): return f"v[{V0+8*t+4*s}:{V0+8*t+4*s+3}]"
def Sr(i): return S0 + 16 * (i & 1)
def Or(i): return O0 + 16 * (i & 1)

def drain(ob, b, count=True):
    slot = b % 6
    off = (slot & 3) * PS
    L = [f"ds_write_b128 v1, v[{ob}:{ob+3}] offset:{off}",
         f"ds_write_b128 v1, v[{ob+4}:{ob+7}] offset:{off + 1024}",
         f"ds_write_addtid_b32 v{ob+8} offset:{LPL + slot*2048}"]
    if count: L.append(f"ds_add_u32 v3, v2 offset:{CNT + b*256}")
    return L

def spin(p, lab, sleep, lim="0x100000"):
    p("s_add_u32 s53, s53, 1")
    p(f"s_cmp_gt_u32 s53, {lim}")
    p("s_cbranch_scc1 K2_END")
    p(f"s_sleep {sleep}")
    p(f"s_branch {lab}")

def attn_main(p, ladder, exp, pos=(1, 4, 10)):
    for b in range(8):
        for t in range(8):
            sc, sn = Sr(t), Sr(t + 1)
            extra = {}
            ob = Or(b + 1)
            def put(i, L):
                for k, l in enumerate(L): extra.setdefault(i + k, []).append(l)
            if t == 1 and b > 0:
                if b - 1 == 4: put(0, ["v_add_u32 v1, 0x10000, v1"])
                if b - 1 == 6:
                    put(0, ["v_subrev_u32 v1, 0x10000, v1"])
                    if 'noside' not in exp: extra.setdefault(1, []).extend(["s_branch K2_BP", "K2_BPRET:"])
                put(2, drain(ob, b - 1))
                if ladder and b - 1 in ladder: put(6, [f"s_setprio {ladder[b-1]}"])
            if t == 2 and 0 < b < 7:
                put(2, [f"ds_read_b128 v[{ob}:{ob+3}], v2 offset:{ZOFF}",
                        f"ds_read_b128 v[{ob+4}:{ob+7}], v2 offset:{ZOFF}"])
                put(5, [f"ds_read_b32 v{ob+8}, v2 offset:{ZOFF}"])
            if t == 6 and b < 7:
                put(pos[1] + 1, [f"ds_read_b128 v[{Q}:{Q+3}], v0 offset:{(b+1)*1024}"])
            for i in range(16):
                p(f"v_exp_f32 v{sc+i}, v{sc+i}")
                if i == pos[0] and (b, t) != (0, 0):
                    op = Or(b) if t > 0 else Or(b + 1)
                    p(f"v_smfmac_f32_32x32x32_bf16 v[{op}:{op+15}], {Vf((t-1)&7,1)}, v[{sn+8}:{sn+15}], v2")
                if i == pos[1] and (b, t) != (7, 7):
                    if t == 7: p("s_waitcnt vmcnt(0) lgkmcnt(0)" if b == 0 else "s_waitcnt lgkmcnt(0)")
                    elif b == 0: p(f"s_waitcnt vmcnt({3*(6-t)+2})")
                    p(f"v_mfma_f32_32x32x16_bf16 v[{sn}:{sn+15}], {Kf((t+1)&7)}, v[{Q}:{Q+3}], 0")
                if i == pos[2]:
                    oc = Or(b)
                    p(f"v_smfmac_f32_32x32x32_bf16 v[{oc}:{oc+15}], {Vf(t,0)}, v[{sc}:{sc+7}], v2")
                for l in extra.get(i, []): p(l)
        if 'iter' in exp and b & 1: p.stamp(6 + b // 2)

def q_offset(p, dst, tmp, lane):
    p(f"v_bfe_u32 v{dst}, v{lane}, 3, 2")
    p(f"v_lshlrev_b32 v{dst}, 10, v{dst}")
    p(f"v_and_b32 v{tmp}, 0x27, v{lane}")
    p(f"v_lshl_add_u32 v{dst}, v{tmp}, 4, v{dst}")

def gen_k2(name, stamps=False, ladder=True, exp=''):
    ladder = {4: 2, 5: 1, 6: 0} if ladder else None
    p = Prog()
    p.stamps = stamps
    st = (lambda i, real=False: None) if 'iter' in exp else p.stamp
    p.label(name)
    p.stamp(0, True); p.stamp(1)
    p("s_cmp_ge_u32 s2, 256")
    p("s_cbranch_scc1 K2_END")
    p("s_load_dwordx2 s[8:9], s[0:1], 88")
    p("s_load_dwordx2 s[4:5], s[0:1], 72")
    p("v_lshrrev_b32 v105, 6, v0")
    p("v_and_b32 v1, 63, v0")
    p(f"v_readfirstlane_b32 s{S_W}, v105")
    p("s_and_b32 s3, s2, 7")
    p("s_lshl_b32 s3, s3, 5")
    p(f"s_lshr_b32 s{S_L}, s2, 3")
    p(f"s_add_u32 s{S_L}, s{S_L}, s3")
    p(f"s_lshr_b32 s{S_RT}, s{S_L}, 2")
    p(f"s_and_b32 s{S_SUB}, s{S_L}, 3")
    p("s_setprio 3")
    q_offset(p, 112, 113, 1)
    p(f"s_lshl_b32 s{S_QO}, s{S_RT}, 15")
    p(f"s_lshl_b32 s10, s{S_SUB}, 7")
    p(f"s_add_u32 s{S_QO}, s{S_QO}, s10")
    p(f"s_mov_b32 s{SWS+2}, {WS_SIZE:#x}")
    p(f"s_mov_b32 s{SWS+3}, 0x20000")
    p("s_mov_b32 s53, 0")
    p(f"s_sub_u32 s{S_SW}, s{S_W}, 4")
    p("s_cbranch_scc1 K2_SIDE")
    p("v_lshlrev_b32 v0, 4, v1")
    p("v_lshrrev_b32 v114, 5, v1")
    p("v_and_b32 v115, 15, v1")
    p("v_lshl_add_u32 v114, v114, 4, v115")
    p("v_lshlrev_b32 v114, 4, v114")
    p(f"s_lshl_b32 s11, s{S_SW}, 13")
    p(f"s_add_u32 s12, s11, {VF:#x}")
    p(f"s_add_u32 s11, s11, {KF:#x}")
    p("s_add_u32 s13, s11, 4096")
    p("s_add_u32 s14, s12, 4096")
    p("s_mov_b32 s16, 0x0000ffff")
    p("s_mov_b32 s17, 0x0000ffff")
    p("v_and_b32 v116, 27, v1")
    p("v_cmp_eq_u32 vcc, 16, v116")
    p("v_mov_b32 v117, 0x3f803f80")
    p(f"s_cmp_ge_u32 s{S_SW}, 4")
    p("v_cndmask_b32 v116, 0, v117, vcc")
    p("v_mov_b32 v117, v116")
    p("s_cbranch_scc1 K2_YOUNG")
    def movs(t):
        for r in range(4): p(f"v_pk_mov_b32 v[{V0+8*t+2*r}:{V0+8*t+2*r+1}], v[116:117], v[116:117]")
    def setup():
        for r in range(9): p(f"v_mov_b32 v{O0+r}, 0")
        for r in range(9): p(f"v_mov_b32 v{O0+16+r}, 0")
        p(f"v_mov_b32 v2, {IDX:#x}")
        p("v_lshlrev_b32 v3, 2, v1")
        p(f"s_lshl_b32 s3, s{S_SW}, 11")
        p(f"s_add_u32 s3, s3, {PART}")
        p("v_add_u32 v1, s3, v0")
        p(f"s_lshl_b32 m0, s{S_SW}, 8")
    def loads(inter):
        p(f"buffer_load_dwordx4 v[{Q}:{Q+3}], v112, {W}, s{S_QO} offen")
        for t in range(8):
            p(f"buffer_load_dwordx4 {Kf(t)}, v0, {W}, s{11 if t < 4 else 13} offen offset:{(t&3)*1024}")
            p("s_mov_b64 exec, s[16:17]")
            for s in range(2):
                p(f"buffer_load_dwordx4 {Vf(t,s)}, v114, {W}, s{12 if t < 4 else 14} offen offset:{(t&3)*1024 + s*512}")
            if inter:
                p("s_not_b64 exec, s[16:17]")
                movs(t)
            p("s_mov_b64 exec, -1")
            if inter and t == 3: setup()
    st(6)
    p("s_waitcnt lgkmcnt(0)")
    st(7)
    p(f"s_mov_b64 s[{SWS}:{SWS+1}], s[8:9]")
    loads(True)
    st(8)
    p("s_barrier")
    p.label("K2_GO")
    p(f"v_add_u32 v0, {QL}, v0")
    st(9)
    p("s_waitcnt vmcnt(23)")
    p(f"v_mfma_f32_32x32x16_bf16 v[{S0}:{S0+15}], {Kf(0)}, v[{Q}:{Q+3}], 0")
    p.stamp(2)
    p.stamp(3)
    attn_main(p, ladder, exp)
    ob = Or(7)
    p(f"v_smfmac_f32_32x32x32_bf16 v[{ob}:{ob+15}], {Vf(7,1)}, v[{Sr(1)+8}:{Sr(1)+15}], v2")
    for l in drain(ob, 7, False): p(l)
    p("s_waitcnt lgkmcnt(0)")
    p.stamp(4)
    p("s_barrier")
    p.stamp(5, True)
    p("s_barrier")
    p(f"ds_read_b32 v4, v3 offset:{REDO}")
    p("s_waitcnt lgkmcnt(0)")
    p("v_cmp_ne_u32 vcc, 0, v4")
    p("s_cbranch_vccnz K2_SLOWA")
    p.dump_stamps(10, SWS, 2, S_W, STAMP2, (4, 5))
    p("s_endpgm")
    p.label("K2_YOUNG")
    p("s_not_b64 exec, s[16:17]")
    for t in range(8): movs(t)
    p("s_mov_b64 exec, -1")
    setup()
    st(6)
    p("s_waitcnt lgkmcnt(0)")
    p(f"s_mov_b64 s[{SWS}:{SWS+1}], s[8:9]")
    p("s_barrier")
    st(7)
    loads(False)
    st(8)
    p(f"ds_add_u32 v3, v2 offset:{LDI}")
    p("s_branch K2_GO")
    p.label("K2_BP")
    j = Or(0) + 10
    p(f"ds_read2st64_b32 v[{j}:{j+1}], v3 offset0:{FF//256} offset1:{FF//256 + 1}")
    p("s_waitcnt lgkmcnt(0)")
    p(f"v_and_b32 v{j}, v{j}, v{j+1}")
    p(f"v_cmp_ne_u32 vcc, 1, v{j}")
    p("s_cbranch_vccz K2_BPRET")
    spin(p, "K2_BP", 4)

    p.label("K2_SIDE")
    T = 8; ST = 72; ACC = 136
    p(f"s_mov_b32 s{S_SW}, s{S_W}")
    p("v_lshlrev_b32 v2, 4, v0")
    for r in range(4): p(f"v_mov_b32 v{T+r}, 0")
    p(f"ds_write_b128 v2, v[{T}:{T+3}] offset:{CNT}")
    p(f"ds_write_b128 v2, v[{T}:{T+3}] offset:{CNT + 4096}")
    p("v_lshlrev_b32 v0, 4, v1")
    p(f"ds_write_b128 v0, v[{T}:{T+3}] offset:{ZERO}")
    p(f"s_lshl_b32 s3, s{S_SW}, 13")
    p(f"s_add_u32 s3, s3, s{S_QO}")
    p(f"s_lshl_b32 s10, s{S_SW}, 11")
    p(f"s_add_u32 m0, s10, {QL}")
    p("s_add_u32 s11, s3, 4096")
    p(f"s_cmp_lt_u32 s2, 68")
    p("s_cselect_b32 s54, 1, 0")
    p(f"s_cmp_eq_u32 s{S_SW}, 0")
    p("s_cselect_b32 s54, s54, 0")
    p("s_waitcnt lgkmcnt(0)")
    p(f"s_mov_b64 s[{SWS}:{SWS+1}], s[8:9]")
    p(f"buffer_load_dwordx4 v112, {W}, s3 offen lds")
    p("s_add_u32 m0, m0, 1024")
    p("s_cmp_eq_u32 s54, 0")
    p(f"buffer_load_dwordx4 v112, {W}, s11 offen lds")
    p("s_cbranch_scc1 K2_NORED0")
    p("v_lshlrev_b32 v7, 3, v1")
    p("s_lshl_b32 s12, s2, 9")
    p(f"s_add_u32 s12, s12, {KVP:#x}")
    for i in range(32):
        p(f"buffer_load_dwordx2 v[{ST+2*i}:{ST+2*i+1}], v7, {W}, s12 offen")
        if i < 31: p(f"s_add_u32 s12, s12, {KVN*4}")
    p("s_waitcnt vmcnt(32)")
    p("s_barrier")
    p("s_waitcnt vmcnt(0)")
    n = 32
    while n > 1:
        n //= 2
        for i in range(n):
            a, b = (2 * i, 2 * i + 1)
            p(f"v_pk_add_f32 v[{ST+2*i}:{ST+2*i+1}], v[{ST+2*a}:{ST+2*a+1}], v[{ST+2*b}:{ST+2*b+1}]")
    p(f"v_cvt_pk_bf16_f32 v{ST}, v{ST}, v{ST+1}")
    p("v_lshlrev_b32 v7, 2, v1")
    p("s_lshl_b32 s12, s2, 8")
    p(f"s_add_u32 s12, s12, {KVF:#x}")
    p(f"buffer_store_dword v{ST}, v7, {W}, s12 offen sc1")
    p("s_branch K2_NORED")
    p.label("K2_NORED0")
    p("s_waitcnt vmcnt(0)")
    p("s_barrier")
    p.label("K2_NORED")
    p("v_and_b32 v2, 7, v1")
    p("v_lshlrev_b32 v2, 2, v2")
    p("v_and_b32 v3, 31, v1")
    p("v_lshlrev_b32 v3, 2, v3")
    p("v_lshlrev_b32 v4, 2, v1")
    p(f"s_lshl_b32 s10, s{S_L}, 5")
    p(f"s_add_u32 s10, s10, {GT:#x}")
    p(f"s_lshl_b32 s11, s{S_RT}, 7")
    p(f"s_add_u32 s11, s11, {GT:#x}")
    p(f"s_lshl_b32 s3, s{S_RT}, 15")
    p(f"s_lshl_b32 s12, s{S_SW}, 13")
    p("s_add_u32 s3, s3, s12")
    p(f"s_add_u32 s3, s3, {PQF:#x}")
    srd(p, SOUT, 4, 2048 * 1024)
    p(f"s_mov_b32 s{S_B}, 0")
    p(f"s_mov_b32 s{S_MODE}, 0")
    p(f"s_mov_b64 s[{S_BAD}:{S_BAD+1}], 0")
    p.dry_run("K2T", "K2T_RET")
    p(f"s_mov_b32 s50, {cnt(4):#x}")
    p.label("K2_POLLST")
    p(f"ds_read_b32 v{T}, v4 offset:{LDI}")
    p("s_waitcnt lgkmcnt(0)")
    p(f"v_cmp_ne_u32 vcc, s50, v{T}")
    p("s_cbranch_vccz K2_START")
    spin(p, "K2_POLLST", 4)
    p.label("K2_START")
    if 'noside' in exp: p("s_endpgm")
    p.stamp(2)
    p(f"buffer_load_dword v5, v2, {W}, s10 offen")
    p(f"buffer_load_dword v6, v3, {W}, s11 offen")
    for i in range(8):
        p(f"buffer_load_dwordx4 v[{T+32+4*i}:{T+32+4*i+3}], v0, {W}, s3 offen offset:{(i&3)*1024}")
        if i == 3: p("s_add_u32 s3, s3, 4096")
    def load16(sreg, dst):
        p(f"s_mov_b32 s3, s{sreg}")
        for i in range(16):
            p(f"buffer_load_dwordx4 v[{dst+4*i}:{dst+4*i+3}], v0, {W}, s3 offen offset:{(i&3)*1024}")
            if i & 3 == 3 and i < 15: p("s_add_u32 s3, s3, 4096")
    S_WA, S_WB = 49, 48
    p(f"s_lshl_b32 s{S_WA}, s{S_SUB}, 2")
    p(f"s_add_u32 s{S_WA}, s{S_WA}, s{S_SW}")
    p(f"s_lshl_b32 s{S_WA}, s{S_WA}, 15")
    p(f"s_add_u32 s{S_WA}, s{S_WA}, {WAF:#x}")
    p("v_lshrrev_b32 v7, 2, v3")
    p("v_min_u32 v7, 16, v7")
    p(f"v_lshrrev_b32 v{T}, 5, v1")
    p(f"v_lshl_add_u32 v7, v7, 1, v{T}")
    p("v_lshlrev_b32 v7, 4, v7")
    p(f"s_mul_i32 s12, s{S_SW}, {8*544}")
    p(f"s_add_u32 s12, s12, {KVF:#x}")
    p.label("K2_POLLKV")
    for i in range(8):
        p(f"buffer_load_dwordx4 v[{T+4*i}:{T+4*i+3}], v7, {W}, s12 offen offset:{i*544} sc1")
    p("s_waitcnt vmcnt(0)")
    p(f"v_max3_u32 v{ACC}, v{T}, v{T+1}, v{T+2}")
    for i in range(3, 31, 2): p(f"v_max3_u32 v{ACC}, v{ACC}, v{T+i}, v{T+i+1}")
    p(f"v_max_u32 v{ACC}, v{ACC}, v{T+31}")
    p(f"v_cmp_eq_u32 vcc, -1, v{ACC}")
    p("s_cbranch_vccz K2_GOTKV")
    p("s_add_u32 s53, s53, 1")
    p("s_cmp_gt_u32 s53, 0x8000")
    p("s_cbranch_scc1 K2_GOTKV")
    p("s_sleep 8")
    p("s_branch K2_POLLKV")
    p.label("K2_GOTKV")
    p.stamp(3)
    p(f"s_lshl_b32 s3, s{S_SW}, 13")
    p(f"s_add_u32 s3, s3, {OAF}")
    p("v_add_u32 v7, s3, v0")
    p(f"s_mov_b32 s11, {f2u(1e-6):#x}")
    p("v_sub_f32 v5, 1.0, v5")
    p(f"s_mov_b32 s3, s{S_WA}")
    def oa_mfma(i):
        o = ACC + 16 * (i & 1)
        p(f"v_mfma_f32_32x32x16_bf16 v[{o}:{o+15}], v[{T+4*i}:{T+4*i+3}], v[{T+32+4*i}:{T+32+4*i+3}], 0")
    oa_mfma(0)
    for i in range(8):
        if i < 7: oa_mfma(i + 1)
        for k in (2 * i, 2 * i + 1):
            p(f"buffer_load_dwordx4 v[{ST+4*k}:{ST+4*k+3}], v0, {W}, s3 offen offset:{(k&3)*1024}")
        if i & 1: p("s_add_u32 s3, s3, 4096")
        o = ACC + 16 * (i & 1)
        p(f"v_add_f32 v{o+8}, s11, v{o+8}")
        p(f"v_rcp_f32 v{o+8}, v{o+8}")
        p(f"v_mul_f32 v{o+8}, v6, v{o+8}")
        for j in range(8): p(f"v_mul_f32 v{o+j}, v{o+8}, v{o+j}")
        for j in range(4): p(f"v_cvt_pk_bf16_f32 v{o+12+j}, v{o+2*j}, v{o+2*j+1}")
        p(f"ds_write_b128 v7, v[{o+12}:{o+15}] offset:{i*1024}")
    p("v_mov_b32 v6, 1")
    p(f"ds_add_u32 v4, v6 offset:{OACNT}")
    p(f"s_add_u32 s{S_WA}, s{S_WA}, 0x4000")
    load16(S_WA, T)
    p.label("K2_POLLOA")
    p(f"ds_read_b32 v7, v4 offset:{OACNT}")
    p("s_waitcnt lgkmcnt(0)")
    p(f"v_cmp_ne_u32 vcc, 4, v7")
    p("s_cbranch_vccz K2_GOTOA")
    spin(p, "K2_POLLOA", 2)
    p.label("K2_GOTOA")
    B = ACC + 16
    p(f"s_lshl_b32 s{S_WB}, s{S_SW}, 14")
    p(f"s_add_u32 s{S_WB}, s{S_WB}, {WBF:#x}")
    p(f"s_mov_b32 s3, s{S_WB}")
    p(f"s_add_u32 s{S_WB}, s{S_WB}, 0x10000")
    for half in range(2):
        src = ST if half == 0 else T
        for i in range(16):
            hd = half * 16 + i
            j = i & 1
            p(f"ds_read_b128 v[{B+4*j}:{B+4*j+3}], v0 offset:{OAF + hd*1024}")
            if i == 0: p("s_waitcnt vmcnt(16)")
            p("s_waitcnt lgkmcnt(0)")
            C = "0" if (half == 0 and i == 0) else f"v[{ACC}:{ACC+15}]"
            p(f"v_mfma_f32_32x32x16_bf16 v[{ACC}:{ACC+15}], v[{src+4*i}:{src+4*i+3}], v[{B+4*j}:{B+4*j+3}], {C}")
            if half == 0:
                p(f"buffer_load_dwordx4 v[{ST+4*i}:{ST+4*i+3}], v0, {W}, s3 offen offset:{(i&3)*1024}")
                if i & 3 == 3 and i < 15: p("s_add_u32 s3, s3, 4096")
    p(f"s_lshl_b32 s3, s{S_L}, 2")
    p(f"s_add_u32 s3, s3, s{S_SW}")
    p("s_lshl_b32 s10, s3, 12")
    p(f"s_add_u32 s10, s10, {OUTA:#x}")
    for q in range(4):
        p(f"buffer_store_dwordx4 v[{ACC+4*q}:{ACC+4*q+3}], v0, {W}, s10 offen offset:{q*1024} sc1")
    p("s_and_b32 s3, s3, 15")
    p("s_lshl_b32 s3, s3, 2")
    p(f"s_lshl_b32 s10, s{S_RT}, 7")
    p("s_add_u32 s3, s3, s10")
    p(f"s_add_u32 s3, s3, {FLG:#x}")
    p("v_mov_b32 v7, 0")
    p("v_lshrrev_b32 v3, 5, v1")
    p("v_lshlrev_b32 v3, 7, v3")
    p("v_lshl_add_u32 v3, v2, 2, v3")
    p(f"v_bfe_u32 v{T}, v1, 4, 1")
    p(f"v_lshl_add_u32 v3, v{T}, 9, v3")
    p(f"v_add_u32 v3, {QL}, v3")
    p("s_mov_b32 s60, 0x00ff00ff")
    p("s_mov_b32 s61, 0x00ff00ff")
    p("s_not_b64 exec, s[60:61]")
    p(f"v_mov_b32 v3, {ZERO}")
    p("s_mov_b64 exec, -1")
    S_DU = 55
    p(f"s_mov_b32 s50, {cnt(8):#x}")
    p(f"s_mov_b32 s{S_DU}, s{S_SW}")
    p(f"s_mov_b32 s51, {(127-80) << 23:#x}")
    p(f"s_mov_b32 s57, {180 << 23:#x}")
    p("s_waitcnt vmcnt(0)")
    p("s_mov_b64 exec, 1")
    p(f"buffer_store_dword v6, v7, {W}, s3 offen sc1")
    p("s_mov_b64 exec, -1")
    p(f"s_mov_b32 s59, 0")
    p.stamp(6)

    p.label("K2_BLK1")
    p(f"s_lshl_b32 m0, s{S_DU}, 8")
    p(f"ds_read_b32 v{T+1}, v4 offset:{FF}")
    p(f"ds_read_addtid_b32 v{T} offset:{CNT}")
    p("s_waitcnt lgkmcnt(0)")
    p(f"v_cmp_ne_u32 vcc, s50, v{T}")
    p("s_cbranch_vccz K2_DUTY")
    p("s_cmp_eq_u32 s59, 0")
    p("s_cbranch_scc1 K2_GETA")
    p(f"v_cmp_ne_u32 vcc, 1, v{T+1}")
    p("s_cbranch_vccz K2_GOTF")
    spin(p, "K2_BLK1", 4)
    p.label("K2_DUTY")
    p(f"s_cmp_ge_u32 s{S_DU}, 6")
    p(f"s_cselect_b32 s3, 6, 0")
    p(f"s_sub_u32 s3, s{S_DU}, s3")
    p("s_lshl_b32 s10, s3, 14")
    p(f"s_add_u32 s10, s10, {PART}")
    p("v_add_u32 v7, s10, v0")
    p("s_lshl_b32 m0, s3, 11")
    Lr = T + 56
    for w in range(8): p(f"ds_read_addtid_b32 v{Lr+w} offset:{LPL + w*256}")
    for i in range(6): p(f"ds_read_b128 v[{T+4*i}:{T+4*i+3}], v7 offset:{i*1024}")
    p("s_waitcnt lgkmcnt(6)")
    p(f"v_pk_add_f32 v[{Lr}:{Lr+1}], v[{Lr}:{Lr+1}], v[{Lr+2}:{Lr+3}]")
    p(f"v_pk_add_f32 v[{Lr+4}:{Lr+5}], v[{Lr+4}:{Lr+5}], v[{Lr+6}:{Lr+7}]")
    for i in range(6, 14): p(f"ds_read_b128 v[{T+4*i}:{T+4*i+3}], v7 offset:{i*1024}")
    p(f"v_pk_add_f32 v[{Lr}:{Lr+1}], v[{Lr}:{Lr+1}], v[{Lr+4}:{Lr+5}]")
    p(f"v_add_f32 v6, v{Lr}, v{Lr+1}")
    p("s_waitcnt lgkmcnt(10)")
    for i in range(14, 16): p(f"ds_read_b128 v[{T+4*i}:{T+4*i+3}], v7 offset:{i*1024}")
    p(f"v_subrev_u32 v7, s51, v6")
    p(f"v_rcp_f32 v6, v6")
    p(f"v_cmp_le_u32 vcc, s57, v7")
    def padd(w):
        for j in range(4):
            p(f"v_pk_add_f32 v[{T+2*j}:{T+2*j+1}], v[{T+2*j}:{T+2*j+1}], v[{T+8*w+2*j}:{T+8*w+2*j+1}]")
    padd(1)
    p(f"s_or_b64 s[{S_BAD}:{S_BAD+1}], s[{S_BAD}:{S_BAD+1}], vcc")
    p(f"v_mul_f32 v6, v5, v6")
    for w in range(2, 8):
        p(f"s_waitcnt lgkmcnt({2*(7-w)})")
        padd(w)
    for j in range(4):
        p(f"v_pk_mul_f32 v[{T+2*j}:{T+2*j+1}], v[{T+2*j}:{T+2*j+1}], v[6:7] op_sel_hi:[1,0]")
    for j in range(4): p(f"v_cvt_pk_bf16_f32 v{T+8+j}, v{T+2*j}, v{T+2*j+1}")
    p(f"s_lshl_b32 s3, s{S_DU}, 10")
    p("v_add_u32 v7, s3, v0")
    p("v_mov_b32 v6, 1")
    p(f"s_lshl_b32 m0, s{S_DU}, 8")
    p(f"ds_write_b128 v7, v[{T+8}:{T+11}] offset:{QL}")
    p(f"ds_write_addtid_b32 v6 offset:{FF}")
    p(f"s_mov_b32 s3, s{S_DU}")
    p(f"s_add_u32 s{S_DU}, s{S_DU}, 4")
    p(f"s_cmp_eq_u32 s3, s{S_B}")
    p("s_cselect_b32 s3, s59, 0")
    p("s_cmp_eq_u32 s3, 0")
    p("s_cbranch_scc1 K2_BLK1")
    p.label("K2_GOTF")
    p(f"ds_read_b128 v[{T+16}:{T+19}], v3")
    p(f"ds_read_b128 v[{T+20}:{T+23}], v3 offset:256")
    p("v_add_u32 v4, 256, v4")
    p("s_mov_b64 exec, s[60:61]")
    p("v_add_u32 v3, 1024, v3")
    p("s_mov_b64 exec, -1")
    def bm(i):
        ct, ks = i >> 1, i & 1
        a = ACC + ct * 4
        p(f"v_mfma_f32_16x16x32_bf16 v[{a}:{a+3}], v[{ST+4*i}:{ST+4*i+3}], v[{T+16+4*ks}:{T+19+4*ks}], v[{a}:{a+3}]")
    p(f"s_mov_b32 s3, s{S_WB}")
    p(f"s_add_u32 s{S_WB}, s{S_WB}, 0x10000")
    p(f"s_cmp_eq_u32 s{S_B}, 6")
    p("s_waitcnt vmcnt(0) lgkmcnt(0)")
    p("s_cbranch_scc1 K2_B6")
    for i in range(16):
        bm(i)
        p(f"buffer_load_dwordx4 v[{ST+4*i}:{ST+4*i+3}], v0, {W}, s3 offen offset:{(i&3)*1024}")
        if i & 3 == 3 and i < 15: p("s_add_u32 s3, s3, 4096")
    p(f"s_add_u32 s{S_B}, s{S_B}, 1")
    p(f"s_cmp_eq_u32 s{S_B}, 5")
    p("s_cbranch_scc0 K2_BLK1")
    p(f"s_lshl_b32 s10, s{S_SW}, 14")
    p(f"s_cmp_lt_u32 s{S_SW}, 2")
    p(f"s_mov_b32 s11, {PART}")
    p(f"s_cselect_b32 s11, {OAF}, s11")
    p("s_add_u32 s62, s10, s11")
    p("s_mov_b32 m0, s62")
    p(f"s_add_u32 s3, s{S_WB}, 0x10000")
    for i in range(16):
        p(f"buffer_load_dwordx4 v0, {W}, s3 offen offset:{(i&3)*1024} lds")
        if i & 3 == 3 and i < 15:
            p("s_add_u32 s3, s3, 4096")
            p("s_add_u32 m0, m0, 4096")
    p("s_branch K2_BLK1")
    p.label("K2_B6")
    p("v_add_u32 v7, s62, v0")
    for i in range(16):
        bm(i)
        if i >= 12: p(f"s_waitcnt lgkmcnt(11)")
        p(f"ds_read_b128 v[{ST+4*i}:{ST+4*i+3}], v7 offset:{i*1024}")
    QA, QLr, QF_, QG, OA = T + 32, T + 33, T + 34, T + 35, T + 36
    p(f"s_and_b32 s10, s{S_SW}, 1")
    p(f"s_lshr_b32 s11, s{S_SW}, 1")
    p("s_lshl_b32 s3, s10, 10")
    p("s_lshl_b32 s12, s11, 9")
    p("s_add_u32 s3, s3, s12")
    p(f"s_add_u32 s3, s3, {PART + PS}")
    p(f"v_lshl_add_u32 v{QA}, v1, 3, s3")
    p("v_lshrrev_b32 v7, 1, v1")
    p("s_lshl_b32 s3, s11, 7")
    p(f"s_add_u32 s3, s3, {LPL + 2048}")
    p(f"v_lshl_add_u32 v{QLr}, v7, 2, s3")
    p("v_lshlrev_b32 v6, 2, v7")
    p(f"ds_bpermute_b32 v{QG}, v6, v5")
    p("s_lshl_b32 s3, s10, 3")
    p("s_add_u32 s3, s3, s12")
    p(f"s_add_u32 s3, s3, {QL + 7*1024}")
    p(f"v_lshl_add_u32 v{QF_}, v7, 4, s3")
    p("v_and_b32 v7, 1, v1")
    p(f"v_lshl_add_u32 v{QF_}, v7, 2, v{QF_}")
    p(f"v_lshlrev_b32 v{OA}, 8, v2")
    p("v_lshrrev_b32 v7, 4, v1")
    p(f"v_lshl_add_u32 v{OA}, v7, 4, v{OA}")
    p(f"s_lshl_b32 s58, s{S_L}, 13")
    p(f"s_lshl_b32 s10, s{S_SW}, 8")
    p("s_add_u32 s58, s58, s10")
    p("v_lshlrev_b32 v4, 2, v1")
    p("v_mov_b32 v6, 1")
    p.stamp(8)
    p.label("K2_LAST")
    p("s_waitcnt vmcnt(0) lgkmcnt(0)")
    p("s_barrier")
    p.hops_begin("K2T")
    p.stamp(4)
    for i in range(4): p(f"ds_read2st64_b32 v[{T+24+2*i}:{T+25+2*i}], v{QLr} offset0:{2*i} offset1:{2*i+1}")
    for i in range(4): p(f"ds_read2st64_b64 v[{T+4*i}:{T+4*i+3}], v{QA} offset0:{8*i} offset1:{8*i+4}")
    p("s_waitcnt lgkmcnt(4)")
    p(f"v_pk_add_f32 v[{T+24}:{T+25}], v[{T+24}:{T+25}], v[{T+26}:{T+27}]")
    p(f"v_pk_add_f32 v[{T+28}:{T+29}], v[{T+28}:{T+29}], v[{T+30}:{T+31}]")
    p(f"v_pk_add_f32 v[{T+24}:{T+25}], v[{T+24}:{T+25}], v[{T+28}:{T+29}]")
    p(f"v_add_f32 v{T+24}, v{T+24}, v{T+25}")
    p(f"v_subrev_u32 v7, s51, v{T+24}")
    p(f"v_rcp_f32 v{T+24}, v{T+24}")
    p(f"v_cmp_le_u32 vcc, s57, v7")
    p("s_waitcnt lgkmcnt(0)")
    n = 8
    while n > 1:
        n //= 2
        for i in range(n):
            p(f"v_pk_add_f32 v[{T+2*i}:{T+2*i+1}], v[{T+4*i}:{T+4*i+1}], v[{T+4*i+2}:{T+4*i+3}]")
        if n == 4: p(f"v_mul_f32 v{T+24}, v{QG}, v{T+24}")
    p(f"s_or_b64 s[{S_BAD}:{S_BAD+1}], s[{S_BAD}:{S_BAD+1}], vcc")
    p(f"v_pk_mul_f32 v[{T}:{T+1}], v[{T}:{T+1}], v[{T+24}:{T+25}] op_sel_hi:[1,0]")
    p(f"v_cvt_pk_bf16_f32 v{T}, v{T}, v{T+1}")
    p("s_cbranch_scc0 K2_OKL")
    p(f"ds_write_b32 v4, v6 offset:{REDO}")
    p.label("K2_OKL")
    p(f"ds_write_b32 v{QF_}, v{T}")
    p("s_waitcnt lgkmcnt(0)")
    p.stamp(5)
    p("s_barrier")
    p(f"ds_read_b128 v[{T+16}:{T+19}], v3")
    p(f"ds_read_b128 v[{T+20}:{T+23}], v3 offset:256")
    p(f"ds_read_b32 v7, v4 offset:{REDO}")
    p("s_waitcnt lgkmcnt(0)")
    p.stamp(12)
    p("v_cmp_ne_u32 vcc, 0, v7")
    p("s_cbranch_vccnz K2_SLOWS")
    def fin(i):
        for j in range(4):
            p(f"v_cvt_pk_bf16_f32 v{T+4*i+j}, v{ACC+8*i+2*j}, v{ACC+8*i+2*j+1}")
        p("s_mov_b64 exec, s[60:61]")
        p(f"buffer_store_dwordx4 v[{T+4*i}:{T+4*i+3}], v{OA}, s[{SOUT}:{SOUT+3}], s58 offen offset:{i*64}")
        if i < 3: p("s_mov_b64 exec, -1")
    for i in range(12): bm(i)
    fin(0)
    for i in range(12, 16): bm(i)
    p.stamp(9)
    for i in range(1, 4): fin(i)
    p.hops_end("K2T_RET", HOP)
    if stamps: p("s_waitcnt vmcnt(0)")
    p.stamp(10); p.stamp(11, True)
    p.dump_stamps(13, SWS, 2, S_W, STAMP2, (4, 5))
    p("s_endpgm")

    def geta_loads(dst):
        p("v_lshrrev_b32 v7, 4, v1")
        p("v_lshlrev_b32 v7, 10, v7")
        p("v_lshl_add_u32 v7, v2, 2, v7")
        p(f"s_lshl_b32 s3, s{S_RT}, 2")
        p(f"s_add_u32 s3, s3, s{S_SW}")
        p("s_lshl_b32 s3, s3, 14")
        p(f"s_lshl_b32 s10, s{S_SUB}, 7")
        p("s_add_u32 s3, s3, s10")
        p(f"s_add_u32 s3, s3, {OUTA:#x}")
        for ct in range(8):
            p(f"buffer_load_dwordx4 v[{dst+4*ct}:{dst+4*ct+3}], v7, {W}, s3 offen offset:{(ct&1)*512} sc1")
            if ct & 1 and ct < 7: p("s_add_u32 s3, s3, 4096")
    p.label("K2_GETA")
    p.stamp(7)
    p("v_lshrrev_b32 v7, 4, v1")
    p("v_lshlrev_b32 v7, 2, v7")
    p(f"s_lshl_b32 s3, s{S_RT}, 7")
    p(f"s_lshl_b32 s10, s{S_SW}, 4")
    p("s_add_u32 s3, s3, s10")
    p(f"s_add_u32 s3, s3, {FLG:#x}")
    p(f"buffer_load_dword v{T}, v7, {W}, s3 offen sc1")
    p("s_waitcnt vmcnt(0)")
    p(f"v_cmp_ne_u32 vcc, 1, v{T}")
    p("s_cbranch_vccz K2_GOTA")
    spin(p, "K2_BLK1", 4)
    p.label("K2_GOTA")
    p(f"s_lshl_b32 s3, s{S_L}, 13")
    p(f"buffer_load_dword v{ACC}, v2, s[{SOUT}:{SOUT+3}], s3 offen")
    geta_loads(ACC)
    p("s_mov_b32 s59, 1")
    p("s_branch K2_BLK1")

    p.label("K2_SLOWS")
    p(f"s_cmp_eq_u32 s{S_MODE}, 0")
    p("s_cbranch_scc0 K2_SLOWS2")
    p(f"s_mov_b32 s{S_MODE}, 1")
    p(f"s_mov_b32 s{S_B}, -1")
    p(f"v_mov_b32 v7, 0xff800000")
    p(f"s_lshl_b32 m0, s{S_SW}, 8")
    p.pad(8)
    p(f"ds_write_addtid_b32 v7 offset:{MXT}")
    geta_loads(ACC)
    p(f"s_lshl_b32 s{S_WB}, s{S_SW}, 14")
    p(f"s_add_u32 s{S_WB}, s{S_WB}, {WBF:#x}")
    p("s_waitcnt lgkmcnt(0)")
    p("s_barrier")
    p("s_barrier")
    p("s_branch K2_SLOWS3")
    p.label("K2_SLOWS2")
    for i in range(16): bm(i)
    p.label("K2_SLOWS3")
    p(f"s_add_u32 s{S_B}, s{S_B}, 1")
    p(f"s_cmp_eq_u32 s{S_B}, 8")
    p("s_cbranch_scc1 K2_SLOWF")
    load16(S_WB, ST)
    p(f"s_add_u32 s{S_WB}, s{S_WB}, 0x10000")
    p("s_branch K2_LAST")
    p.label("K2_SLOWF")
    p.pad(8)
    for i in range(4): fin(i)
    p("s_endpgm")

    p.label("K2_SLOWA")
    S1 = S0 + 16; C = O0 + 16
    QO, MA, MX = S1, S1 + 1, S1 + 2
    p(f"v_lshrrev_b32 v{S1+3}, 2, v3")
    q_offset(p, QO, S1 + 4, S1 + 3)
    p(f"v_and_b32 v{MA}, 0x7c, v3")
    p(f"s_mov_b32 s10, s{S_QO}")
    p(f"s_mov_b32 s{S_B}, 0")
    p("s_barrier")
    p.label("K2_SLOWM")
    p(f"buffer_load_dwordx4 v[{Q}:{Q+3}], v{QO}, {W}, s10 offen")
    p(f"v_mov_b32 v{MX}, 0xff800000")
    p("s_waitcnt vmcnt(0)")
    for t in range(8):
        p(f"v_mfma_f32_32x32x16_bf16 v[{S0}:{S0+15}], {Kf(t)}, v[{Q}:{Q+3}], 0")
        for i in range(8): p(f"v_max3_f32 v{MX}, v{MX}, v{S0+2*i}, v{S0+2*i+1}")
    p(f"ds_max_f32 v{MA}, v{MX} offset:{MXT}")
    p(f"v_add_u32 v{MA}, 128, v{MA}")
    p("s_add_u32 s10, s10, 4096")
    p(f"s_add_u32 s{S_B}, s{S_B}, 1")
    p(f"s_cmp_lt_u32 s{S_B}, 8")
    p("s_cbranch_scc1 K2_SLOWM")
    p(f"v_and_b32 v{MA}, 0x7c, v3")
    p(f"s_mov_b32 s10, s{S_QO}")
    p(f"s_mov_b32 s{S_B}, 0")
    p("s_waitcnt lgkmcnt(0)")
    p("s_barrier")
    p.label("K2_SLOWP")
    p(f"buffer_load_dwordx4 v[{Q}:{Q+3}], v{QO}, {W}, s10 offen")
    p(f"ds_read_b32 v{MX}, v{MA} offset:{MXT}")
    for r in range(9): p(f"v_mov_b32 v{O0+r}, 0")
    p("s_waitcnt vmcnt(0) lgkmcnt(0)")
    for r in range(16): p(f"v_sub_f32 v{C+r}, 0, v{MX}")
    for t in range(8):
        p(f"v_mfma_f32_32x32x16_bf16 v[{S0}:{S0+15}], {Kf(t)}, v[{Q}:{Q+3}], v[{C}:{C+15}]")
        for i in range(16): p(f"v_exp_f32 v{S0+i}, v{S0+i}")
        for s in range(2):
            p(f"v_smfmac_f32_32x32x32_bf16 v[{O0}:{O0+15}], {Vf(t,s)}, v[{S0+8*s}:{S0+8*s+7}], v2")
    for l in drain(O0, 7, False): p(l)
    p(f"v_add_u32 v{MA}, 128, v{MA}")
    p("s_add_u32 s10, s10, 4096")
    p(f"s_add_u32 s{S_B}, s{S_B}, 1")
    p("s_waitcnt lgkmcnt(0)")
    p("s_barrier")
    p("s_barrier")
    p(f"s_cmp_lt_u32 s{S_B}, 8")
    p("s_cbranch_scc1 K2_SLOWP")
    p.label("K2_END")
    p("s_endpgm")
    return p
```

```python
import struct
def f2u(x): return struct.unpack('<I', struct.pack('<f', x))[0]
LOG2E = 1.4426950408889634
QF   = 0x000000
PQF  = 0x200000
KF   = 0x400000
VF   = 0x410000
GT   = 0x420000
KVF  = 0x430000
FLG  = 0x440000
WBF  = 0x500000
WAF  = 0x580000
KVP  = 0x600000
OUTA = 0x800000
WS_SIZE = 0x1000000
KVN = 8704
STAMP1 = 0xC00000
STAMP2 = 0xD00000
MF   = 0x4a0000
GG   = 0x468000
TF   = 0x46c000
GQ   = 0x470000
GP   = 0x474000
GK   = 0x478000
EPO  = 0x47c000
FA   = 0x480000
EF   = 0x4b0000
GA   = 0x4b8000
```

```python
from asm import Prog
from common import *

NOTES = """
One launch, 256 workgroups of 12 waves, two phases; hand-offs between workgroups go through d_ws with
write-through (sc1) stores, flags holding a per-launch nonce (epoch word found in d_ws + 1, written back at the
end of the launch) and sc1 loads.
Phase 1: input projections.  Waves 8-11 stream x / W tiles into an LDS ring (LDS-DMA), waves 0-3 run the 128x128
bf16 MFMA GEMM with the phi() / kv-partial epilogues, waves 4-7 compute k, v and the gate from the same ring or
re-lay both output-projection weights into MFMA fragment order.
Phase 2: one workgroup per 8 rows x 32 heads.  Waves 4-11 keep a 256-key slice of K/V in registers and stream the
8 query blocks (S = K Q^T by MFMA, v_exp_f32, P.V and the row sum by sparse MFMA); waves 0-3 finish the linear
attention branch, reduce/normalise, run both output projections and write d_out.
Softmax shift: the first pass uses the stand-in shift 0; every row sum l is checked at run time to lie in
[2^-80, 2^100) (no overflow, no loss by underflow); if any row of the workgroup fails, the workgroup
recomputes its rows with the true row max subtracted (labels SLOWA / SLOWS).
"""

SLOTS = [0, 65536, 98304, 131072]
XTRA = 32768
GATE_L = XTRA + 16384
LPL = 0
QL = 12288
OAF = QL + 9 * 1024
MXT = OAF
CNT = OAF + 32768
FF = CNT + 8 * 256
OACNT = FF + 8 * 256
LDI1 = OACNT + 256
LDI2 = LDI1 + 256
QRDY = LDI2 + 256
GCNT = QRDY + 256
GCN2 = GCNT + 256
REDO = GCN2 + 256
ZERO = REDO + 256
ZEND = ZERO + 1024
assert ZEND <= 65536 and ZEND - CNT <= 8192 and ZERO >= 0xdddd and GATE_L + 1024 <= CNT
PART = 65536
PS = 16384
LDS = PART + 6 * PS
assert LDS <= 163840
IDX = 0xdddd
ZOFF = ZERO - IDX
HOP = 64
ROT = 7
KVAT = 7
STG = False
MSL = 4
PM = 'sc1'
def cnt(n): return (IDX * n) & 0xffffffff

P_GATE, P_OUT, P_DBG, P_WS = 20, 22, 24, 26
SWS, SX, SW1, SW2 = 28, 32, 36, 40
SOUT, SE, SDBG = 32, 36, 40
S_W, S_A = 44, 45
S_RB, S_CB, S_TY, S_KS, S_ST2, S_SOX, S_SO1, S_SO2, S_MX, S_MW, S_N, S_NON = 46, 47, 48, 49, 50, 51, 52, 53, 54, 55, 56, 57
S_L2E, S_EPS = 58, 60
S_L, S_RT, S_SUB, S_B, S_BAD, S_QO, S_MODE, S_WB, S_WA, S_DU = 46, 47, 48, 49, 50, 52, 53, 54, 55, 56
S_C8, S_LO, S_RNG, S_AF, S_MSK, S_W7, S_OO, S_RED, S_SP = 58, 59, 60, 61, 62, 64, 65, 66, 67
W = f"s[{SWS}:{SWS+3}]"

def srd(p, d, base, size):
    p(f"s_mov_b64 s[{d}:{d+1}], s[{base}:{base+1}]")
    p(f"s_mov_b32 s{d+2}, {size:#x}")
    p(f"s_mov_b32 s{d+3}, 0x20000")

def spin(p, lab, sleep, lim="0x100000"):
    p(f"s_add_u32 s{S_SP}, s{S_SP}, 1")
    p(f"s_cmp_gt_u32 s{S_SP}, {lim}")
    p("s_cbranch_scc1 END")
    p(f"s_sleep {sleep}")
    p(f"s_branch {lab}")

ACC1 = 64
def acc(rt, u): return ACC1 + (rt * 2 + u) * 16
def xf(b, rt): return 32 + b * 16 + rt * 4
def wf(b, u): return 32 + b * 16 + 8 + u * 4

def ks_set():
    return [f"s_lshl_b32 s{S_SOX}, s{S_KS}, 7",
            f"s_mul_i32 s{S_SO1}, s{S_KS}, {64*3072:#x}",
            f"s_mul_i32 s{S_SO2}, s{S_KS}, s{S_ST2}"]

def reads(s, t):
    base = SLOTS[s & 3]; b = t & 1
    hi = base >> 16; so = base & 0xffff
    xa = [2, 6, 12][hi] + t; wa = [10, 11, 16][hi]
    L = []
    for rt in range(2):
        L.append(f"ds_read_b128 v[{xf(b,rt)}:{xf(b,rt)+3}], v{xa} offset:{so + rt*4096}")
    for u in range(2):
        for q in range(2):
            L.append(f"ds_read_b64_tr_b16 v[{wf(b,u)+2*q}:{wf(b,u)+2*q+1}], v{wa} offset:{so + 16384 + u*8192 + (16*t + 4*q)*128}")
    return L

def mfmas(s, t, ct_form):
    b = t & 1
    L = []
    for rt in range(2):
        for u in range(2):
            a = acc(rt, u)
            X = f"v[{xf(b,rt)}:{xf(b,rt)+3}]"; Wr = f"v[{wf(b,u)}:{wf(b,u)+3}]"
            C = f"v[{a}:{a+15}]"
            if s == 0 and t == 0: C = "1.0" if u == 0 else "0"
            A, B = (Wr, X) if ct_form else (X, Wr)
            L.append(f"v_mfma_f32_32x32x16_bf16 v[{a}:{a+15}], {A}, {B}, {C}")
    return L

def lds_wait(p, lab, row, val, vaddr, vtmp, sleep, op="ne"):
    p.label(lab)
    p(f"ds_read_b32 v{vtmp}, v{vaddr} offset:{row}")
    p("s_waitcnt lgkmcnt(0)")
    p(f"v_cmp_{op}_u32 vcc, {val}, v{vtmp}")
    p(f"s_cbranch_vccz {lab}_G")
    spin(p, lab, sleep)
    p.label(f"{lab}_G")

def mainloop(p, ct_form):
    def rd(s, t):
        R = reads(s, t)
        return [[R[0], R[2]], [R[3], R[4]], [R[5], R[1]]]
    p("s_barrier")
    p.stamp(3)
    for g in rd(0, 0):
        for l in g: p(l)
    for s in range(8):
        for t in range(4):
            M = mfmas(s, t, ct_form)
            last = (s == 7 and t == 3)
            nx = None if last else (rd(s, t + 1) if t < 3 else rd(s + 1, 0))
            if t < 3:
                p("s_waitcnt lgkmcnt(3)"); p(M[0])
                for l in nx[0]: p(l)
                p("s_waitcnt lgkmcnt(3)"); p(M[1])
                for l in nx[1]: p(l)
                p("s_waitcnt lgkmcnt(4)"); p(M[2])
                for l in nx[2]: p(l)
                p(M[3])
            else:
                p("s_waitcnt lgkmcnt(3)"); p(M[0])
                p("s_waitcnt lgkmcnt(0)")
                if not last:
                    p("s_barrier")
                    if s == 6: p.stamp(4)
                    if STG: p.stamp(5 + s, force=True)
                p(M[1])
                if nx:
                    for l in nx[0]: p(l)
                p(M[2])
                if nx:
                    for l in nx[1]: p(l)
                p(M[3])
                if nx:
                    for l in nx[2]: p(l)

def slot_step(p, r):
    p(f"s_max_u32 s{r}, s{r}, 0x8000")
    p(f"s_add_u32 s{r}, s{r}, 0x8000")
    p(f"s_cmp_eq_u32 s{r}, 0x28000")
    p(f"s_cselect_b32 s{r}, 0, s{r}")

def phi_half(p, b, F, T, hooks=()):
    hooks = list(hooks)
    for j in range(4):
        p(f"v_pk_fma_f32 v[{T+2*j}:{T+2*j+1}], v[{b+2*j}:{b+2*j+1}], s[{S_L2E}:{S_L2E+1}], s[{S_L2E}:{S_L2E+1}] neg_lo:[0,0,1] neg_hi:[0,0,1]")
    for j in range(8):
        p(f"v_exp_f32_e64 v{T+j}, v{T+j} clamp")
        if j in (0, 7) and hooks: p(hooks.pop(0))
    for j in range(8):
        p(f"v_max_f32 v{T+j}, v{T+j}, v{b+j}")
    for j in range(4):
        p(f"v_pk_add_f32 v[{T+2*j}:{T+2*j+1}], v[{T+2*j}:{T+2*j+1}], s[{S_EPS}:{S_EPS+1}]")
    for j in range(4):
        p(f"v_cvt_pk_bf16_f32 v{F+j}, v{T+2*j}, v{T+2*j+1}")
    assert not hooks

def pack(p, a, F):
    for j in range(8):
        p(f"v_cvt_pk_bf16_f32 v{F+j}, v{a+2*j}, v{a+2*j+1}")

Q, K0, V0, S0, O0 = 4, 8, 40, 104, 136
def Kf(t): return f"v[{K0+4*t}:{K0+4*t+3}]"
def Vf(t, s): return f"v[{V0+8*t+4*s}:{V0+8*t+4*s+3}]"
def Sr(i): return S0 + 16 * (i & 1)
def Or(i): return O0 + 16 * (i & 1)

def drain(ob, b, count=True):
    slot = b % 6
    off = (slot & 3) * PS
    L = [f"ds_write_b128 v1, v[{ob}:{ob+3}] offset:{off}",
         f"ds_write_b128 v1, v[{ob+4}:{ob+7}] offset:{off + 1024}",
         f"ds_write_addtid_b32 v{ob+8} offset:{LPL + slot*2048}"]
    if count: L.append(f"ds_add_u32 v3, v2 offset:{CNT + b*256}")
    return L

def attn_main(p, ladder, pos=(1, 4, 10)):
    for b in range(8):
        for t in range(8):
            sc, sn = Sr(t), Sr(t + 1)
            extra = {}
            ob = Or(b + 1)
            def put(i, L):
                for k, l in enumerate(L): extra.setdefault(i + k, []).append(l)
            if t == 1 and b > 0:
                if b - 1 == 4: put(0, ["v_add_u32 v1, 0x10000, v1"])
                if b - 1 == 6:
                    put(0, ["v_subrev_u32 v1, 0x10000, v1"])
                    extra.setdefault(1, []).extend(["s_branch BP", "BPRET:"])
                put(2, drain(ob, b - 1))
                if b - 1 in ladder: put(6, [f"s_setprio {ladder[b-1]}"])
            if t == 2 and 0 < b < 7:
                put(2, [f"ds_read_b128 v[{ob}:{ob+3}], v2 offset:{ZOFF}",
                        f"ds_read_b128 v[{ob+4}:{ob+7}], v2 offset:{ZOFF}"])
                put(5, [f"ds_read_b32 v{ob+8}, v2 offset:{ZOFF}"])
            if t == 6 and 0 < b < 7:
                put(pos[1] + 1, [f"ds_read_b128 v[{Q}:{Q+3}], v0 offset:{(b+1)*1024}"])
            if t == 7 and b == 0:
                extra.setdefault(1, []).extend(["s_branch QW", "QWRET:"])
            for i in range(16):
                p(f"v_exp_f32 v{sc+i}, v{sc+i}")
                if i == pos[0] and (b, t) != (0, 0):
                    op = Or(b) if t > 0 else Or(b + 1)
                    p(f"v_smfmac_f32_32x32x32_bf16 v[{op}:{op+15}], {Vf((t-1)&7,1)}, v[{sn+8}:{sn+15}], v2")
                if i == pos[1] and (b, t) != (7, 7):
                    if t == 7: p("s_waitcnt vmcnt(0) lgkmcnt(0)" if b == 0 else "s_waitcnt lgkmcnt(0)")
                    elif b == 0: p(f"s_waitcnt vmcnt({3*(6-t)+2})")
                    p(f"v_mfma_f32_32x32x16_bf16 v[{sn}:{sn+15}], {Kf((t+1)&7)}, v[{Q}:{Q+3}], 0")
                if i == pos[2]:
                    oc = Or(b)
                    p(f"v_smfmac_f32_32x32x32_bf16 v[{oc}:{oc+15}], {Vf(t,0)}, v[{sc}:{sc+7}], v2")
                for l in extra.get(i, []): p(l)
        if b == 0: p.stamp(6)

def q_offset(p, dst, tmp, lane):
    p(f"v_bfe_u32 v{dst}, v{lane}, 3, 2")
    p(f"v_lshlrev_b32 v{dst}, 10, v{dst}")
    p(f"v_and_b32 v{tmp}, 0x27, v{lane}")
    p(f"v_lshl_add_u32 v{dst}, v{tmp}, 4, v{dst}")

def logical_id(p):
    p("s_and_b32 s3, s2, 7")
    p("s_lshl_b32 s3, s3, 5")
    p(f"s_lshr_b32 s{S_L}, s2, 3")
    p(f"s_add_u32 s{S_L}, s{S_L}, s3")
    p(f"s_lshr_b32 s{S_RT}, s{S_L}, 2")
    p(f"s_and_b32 s{S_SUB}, s{S_L}, 3")
    p(f"s_lshl_b32 s{S_QO}, s{S_RT}, 15")
    p(f"s_lshl_b32 s10, s{S_SUB}, 7")
    p(f"s_add_u32 s{S_QO}, s{S_QO}, s10")

def attn_setup(p):
    logical_id(p)
    p(f"s_sub_u32 s{S_A}, s{S_W}, 4")
    p("v_lshlrev_b32 v3, 2, v1")
    q_offset(p, 112, 113, 1)
    p("v_lshlrev_b32 v0, 4, v1")
    p("v_lshrrev_b32 v114, 5, v1")
    p("v_and_b32 v115, 15, v1")
    p("v_lshl_add_u32 v114, v114, 4, v115")
    p("v_lshlrev_b32 v114, 4, v114")
    p(f"s_lshl_b32 s11, s{S_A}, 13")
    p(f"s_add_u32 s12, s11, {VF:#x}")
    p(f"s_add_u32 s11, s11, {KF:#x}")
    p("s_add_u32 s13, s11, 4096")
    p("s_add_u32 s14, s12, 4096")
    p("s_mov_b32 s16, 0x0000ffff")
    p("s_mov_b32 s17, 0x0000ffff")
    p(f"s_lshl_b32 s18, s{S_A}, 12")
    p(f"s_add_u32 s18, s18, {MF:#x}")
    p(f"s_lshr_b32 s19, s{S_L}, 4")
    p("s_lshl_b32 s19, s19, 10")
    p(f"s_add_u32 s19, s19, {GQ:#x}")
    p("v_lshl_add_u32 v118, v1, 7, s18")
    p("v_and_b32 v115, 7, v1")
    p("v_lshl_add_u32 v115, v115, 7, s19")
    p("v_cmp_lt_u32 vcc, 31, v1")
    p("v_cndmask_b32 v118, v118, v115, vcc")
    p("v_and_b32 v116, 27, v1")
    p("v_cmp_eq_u32 vcc, 16, v116")
    p("v_mov_b32 v117, 0x3f803f80")
    p("v_cndmask_b32 v116, 0, v117, vcc")
    p("v_mov_b32 v117, v116")
    for r in range(32): p(f"v_pk_mov_b32 v[{V0+2*r}:{V0+2*r+1}], v[116:117], v[116:117]")
    for r in range(9): p(f"v_mov_b32 v{O0+r}, 0")
    for r in range(9): p(f"v_mov_b32 v{O0+16+r}, 0")
    p(f"v_mov_b32 v2, {IDX:#x}")
    p(f"s_lshl_b32 s3, s{S_A}, 11")
    p(f"s_add_u32 s3, s3, {PART}")
    p("v_add_u32 v1, s3, v0")
    p(f"s_lshl_b32 m0, s{S_A}, 8")

def kv_loads(p, t0, t1):
    if t0 == 0: p(f"buffer_load_dwordx4 v[{Q}:{Q+3}], v112, {W}, s{S_QO} offen sc1")
    for t in range(t0, t1):
        p(f"buffer_load_dwordx4 {Kf(t)}, v0, {W}, s{11 if t < 4 else 13} offen offset:{(t&3)*1024} sc1")
        p("s_mov_b64 exec, s[16:17]")
        for s in range(2):
            p(f"buffer_load_dwordx4 {Vf(t,s)}, v114, {W}, s{12 if t < 4 else 14} offen offset:{(t&3)*1024 + s*512} sc1")
        p("s_mov_b64 exec, -1")

def flag_wait(p, lab, vt, va, so, sleep):
    p.label(lab)
    p(f"buffer_load_dword v{vt}, v{va}, {W}, {so} offen {PM}")
    p("s_waitcnt vmcnt(0)")
    p(f"v_cmp_ne_u32 vcc, s{S_NON}, v{vt}")
    p(f"s_cbranch_vccz {lab}_G")
    p("s_mov_b64 exec, vcc")
    spin(p, lab, sleep)
    p.label(f"{lab}_G")
    p("s_mov_b64 exec, -1")

def mf_wait(p, lab):
    flag_wait(p, lab, 120, 118, "0", MSL)

def gen(name, stamps=False, exp=''):
    ladder = {4: 2, 5: 1, 6: 0}
    p = Prog()
    p.stamps = stamps
    p.label(name)
    p.stamp(0, True); p.stamp(1)
    p("s_cmp_ge_u32 s2, 256")
    p("s_cbranch_scc1 END")
    p("s_load_dwordx16 s[4:19], s[0:1], 0")
    p("s_load_dwordx8 s[20:27], s[0:1], 64")
    p("v_lshrrev_b32 v21, 6, v0")
    p("v_and_b32 v1, 63, v0")
    p(f"v_readfirstlane_b32 s{S_W}, v21")
    p("s_bfe_u32 s3, s2, 0x20003")
    p("s_lshr_b32 s61, s2, 5")
    p(f"s_and_b32 s{S_RB}, s2, 6")
    p(f"s_lshl_b32 s{S_RB}, s{S_RB}, 1")
    p(f"s_add_u32 s{S_RB}, s{S_RB}, s3")
    p(f"s_and_b32 s{S_TY}, s61, 1")
    p(f"s_and_b32 s{S_CB}, s2, 1")
    p(f"s_lshl_b32 s{S_CB}, s{S_CB}, 2")
    p("s_lshr_b32 s60, s61, 1")
    p(f"s_add_u32 s{S_CB}, s{S_CB}, s60")
    p(f"s_mov_b32 s{S_SP}, 0")
    p(f"s_mov_b32 s{SWS+2}, {WS_SIZE:#x}")
    p(f"s_mov_b32 s{SWS+3}, 0x20000")
    p(f"s_mov_b32 s{SX+2}, {2048*1024:#x}")
    p(f"s_mov_b32 s{SX+3}, 0x20000")
    p(f"s_lshl_b32 s{S_KS}, s3, 1")
    p(f"s_add_u32 s{S_KS}, s{S_KS}, s61")
    p("s_bfe_u32 s3, s2, 0x10001")
    p(f"s_add_u32 s{S_KS}, s{S_KS}, s3")
    p(f"s_and_b32 s{S_KS}, s{S_KS}, {ROT}")
    p(f"s_and_b32 s{S_A}, s{S_W}, 3")
    p(f"s_cmp_lt_u32 s{S_W}, 8")
    p("s_cbranch_scc1 NOTLD")
    p("v_lshrrev_b32 v20, 3, v1")
    p("v_and_b32 v21, 7, v1")
    p("v_lshrrev_b32 v22, 4, v1")
    p("v_xor_b32 v23, v21, v22")
    p("v_lshlrev_b32 v23, 4, v23")
    p("v_lshl_add_u32 v23, v20, 10, v23")
    p(f"s_lshl_b32 s3, s{S_RB}, 17")
    p(f"s_lshl_b32 s{S_MX}, s{S_A}, 15")
    p(f"s_add_u32 s3, s3, s{S_MX}")
    p("v_add_u32 v12, s3, v23")
    p("v_xor_b32 v13, 64, v12")
    p("v_add_u32 v13, 0x2000, v13")
    p("v_add_u32 v14, 0x4000, v12")
    p("v_add_u32 v15, 0x4000, v13")
    p("v_and_b32 v22, 1, v22")
    p("v_lshlrev_b32 v22, 2, v22")
    p("v_xor_b32 v21, v21, v22")
    p("v_lshlrev_b32 v21, 4, v21")
    p(f"s_lshl_b32 s3, s{S_A}, 4")
    p("v_add_u32 v20, s3, v20")
    p(f"s_lshl_b32 s3, s{S_CB}, 7")
    p("v_add_u32 v21, s3, v21")
    p(f"s_cmp_eq_u32 s{S_TY}, 0")
    p("s_cselect_b32 s3, 0, 1024")
    p("s_cselect_b32 s61, 0, 2048")
    p("s_movk_i32 s60, 3072")
    p(f"s_cselect_b32 s{S_ST2}, 1024, s60")
    p("v_mad_u32_u24 v16, v20, s60, v21")
    p("v_add_u32 v16, s3, v16")
    p(f"v_add_u32 v17, {8*3072}, v16")
    p(f"v_mad_u32_u24 v18, v20, s{S_ST2}, v21")
    p("v_add_u32 v18, s61, v18")
    p(f"s_lshl_b32 s3, s{S_ST2}, 3")
    p("v_add_u32 v19, s3, v18")
    p(f"s_lshl_b32 s{S_ST2}, s{S_ST2}, 6")
    p(f"s_lshl_b32 s{S_MX}, s{S_A}, 12")
    p(f"s_lshl_b32 s{S_MW}, s{S_A}, 11")
    for l in ks_set(): p(l)
    p(f"s_mov_b32 s{SW1+2}, {512*3072:#x}")
    p(f"s_mov_b32 s{SW1+3}, 0x20000")
    p(f"s_cmp_eq_u32 s{S_TY}, 0")
    p(f"s_cselect_b32 s{SW2+2}, {512*1024:#x}, s{SW1+2}")
    p(f"s_mov_b32 s{SW2+3}, 0x20000")
    p(f"s_mov_b32 s{S_N}, 0")
    p("s_mov_b32 s62, 0")
    p("s_waitcnt lgkmcnt(0)")
    p(f"s_mov_b64 s[{SX}:{SX+1}], s[4:5]")
    p(f"s_mov_b64 s[{SW1}:{SW1+1}], s[6:7]")
    p(f"s_cselect_b64 s[{SW2}:{SW2+1}], s[12:13], s[6:7]")
    p(f"s_mov_b64 s[{SWS}:{SWS+1}], s[{P_WS}:{P_WS+1}]")
    p.label("LDL")
    p(f"s_add_u32 s63, s{S_MW}, s62")
    p(f"s_add_u32 s64, s{S_MX}, s62")
    for i in range(4):
        p(f"s_add_u32 m0, s64, {i*1024:#x}")
        p(f"buffer_load_dwordx4 v{12+i}, s[{SX}:{SX+3}], s{S_SOX} offen lds")
    for i in range(2):
        p(f"s_add_u32 m0, s63, {16384 + i*1024:#x}")
        p(f"buffer_load_dwordx4 v{16+i}, s[{SW1}:{SW1+3}], s{S_SO1} offen lds")
    for i in range(2):
        p(f"s_add_u32 m0, s63, {24576 + i*1024:#x}")
        p(f"buffer_load_dwordx4 v{18+i}, s[{SW2}:{SW2+3}], s{S_SO2} offen lds")
    p(f"s_add_u32 s{S_KS}, s{S_KS}, 1")
    p(f"s_and_b32 s{S_KS}, s{S_KS}, 7")
    for l in ks_set(): p(l)
    slot_step(p, 62)
    p(f"s_add_u32 s{S_N}, s{S_N}, 1")
    p(f"s_cmp_eq_u32 s{S_N}, 1")
    p("s_cbranch_scc1 LDL")
    p("s_waitcnt vmcnt(8)")
    p("s_barrier")
    p(f"s_cmp_lt_u32 s{S_N}, 8")
    p("s_cbranch_scc1 LDL")
    p("v_mov_b32 v27, 0")
    p(f"s_mov_b32 s3, {EPO:#x}")
    p(f"buffer_load_dword v26, v27, {W}, s3 offen sc1")
    p("s_waitcnt vmcnt(0)")
    p("s_barrier")
    p("v_add_u32 v26, 1, v26")
    p("s_setprio 3")
    p(f"v_readfirstlane_b32 s{S_NON}, v26")
    attn_setup(p)
    lds_wait(p, "YW", LDI1, f"{cnt(4):#x}", 3, 120, 4)
    mf_wait(p, "YMF")
    kv_loads(p, 0, 8)
    p(f"ds_add_u32 v3, v2 offset:{LDI2}")
    p("s_branch GO")

    p.label("NOTLD")
    p(f"s_cmp_lt_u32 s{S_W}, 4")
    p("s_cbranch_scc1 GEMM")
    p("s_setprio 1")
    p("v_lshlrev_b32 v12, 4, v1")
    p("v_bfe_u32 v20, v1, 2, 2")
    p("v_and_b32 v21, 3, v1")
    p("v_lshrrev_b32 v22, 4, v1")
    p("v_and_b32 v23, 15, v1")
    p("v_mov_b32 v27, 0")
    p(f"s_mov_b32 s{SE+3}, 0x20000")
    p(f"s_mov_b32 s3, {EPO:#x}")
    p("s_waitcnt lgkmcnt(0)")
    p(f"s_mov_b64 s[{SWS}:{SWS+1}], s[{P_WS}:{P_WS+1}]")
    p(f"buffer_load_dword v26, v27, {W}, s3 offen sc1")
    p(f"s_cmp_eq_u32 s{S_TY}, 0")
    p("s_cbranch_scc0 LAY")
    S_MD, S_TL = 50, 51
    p(f"s_cmp_lt_u32 s{S_CB}, 4")
    p(f"s_cselect_b64 s[{SE}:{SE+1}], s[14:15], s[16:17]")
    p(f"s_mov_b32 s{SE+2}, 0x4000")
    p(f"s_lshl_b32 s3, s{S_A}, 12")
    p(f"s_add_u32 m0, s3, {XTRA:#x}")
    p(f"s_lshr_b32 s63, s{S_CB}, 2")
    for j in range(4):
        p(f"buffer_load_dwordx4 v12, s[{SE}:{SE+3}], s3 offen offset:{j*1024} lds")
    srd(p, SE, P_GATE, 1024)
    p(f"s_mov_b32 m0, {GATE_L:#x}")
    p(f"s_cmp_lt_u32 s{S_A}, 2")
    p(f"buffer_load_dwordx4 v12, s[{SE}:{SE+3}], 0 offen lds")
    p(f"s_cselect_b32 s{S_MD}, s63, s{S_A}")
    p(f"s_cselect_b32 s63, s{S_A}, s63")
    p(f"s_and_b32 s{S_TL}, s{S_CB}, 3")
    p(f"s_lshl_b32 s{S_TL}, s{S_TL}, 1")
    p(f"s_add_u32 s{S_TL}, s{S_TL}, s63")
    p("v_bfe_u32 v24, v1, 1, 3")
    p("v_xor_b32 v24, v24, v22")
    p("v_lshlrev_b32 v24, 4, v24")
    p("v_lshl_add_u32 v24, v23, 7, v24")
    p(f"s_lshl_b32 s3, s{S_TL}, 11")
    p("v_add_u32 v4, s3, v24")
    p("v_xor_b32 v5, 64, v4")
    p("v_lshl_add_u32 v8, v22, 3, v20")
    p("v_lshlrev_b32 v8, 5, v8")
    p("v_lshl_add_u32 v8, v21, 3, v8")
    p("v_lshlrev_b32 v9, 4, v22")
    for j in range(4): p(f"v_mov_b32 v{64+j}, 0")
    p(f"s_mov_b32 s{S_N}, 0")
    p("s_mov_b32 s62, 0")
    p("s_barrier")
    p("s_waitcnt vmcnt(0)")
    p.label("AUXL")
    p(f"s_lshl_b32 s3, s{S_KS}, 11")
    p("v_add_u32 v6, s3, v8")
    p(f"s_lshl_b32 s3, s{S_KS}, 7")
    p("v_add_u32 v7, s3, v9")
    p("v_add_u32 v2, s62, v4")
    p("v_add_u32 v3, s62, v5")
    slot_step(p, 62)
    p(f"s_add_u32 s{S_KS}, s{S_KS}, 1")
    p(f"s_and_b32 s{S_KS}, s{S_KS}, 7")
    p(f"s_cmp_eq_u32 s{S_N}, 7")
    p("s_cbranch_scc1 AUXN")
    p("s_barrier")
    p.label("AUXN")
    p(f"s_add_u32 s{S_N}, s{S_N}, 1")
    p(f"s_cmp_eq_u32 s{S_MD}, 3")
    p("s_cbranch_scc1 AUXC")
    p("ds_read_b128 v[32:35], v2")
    p("ds_read_b128 v[36:39], v3")
    p(f"s_cmp_eq_u32 s{S_MD}, 2")
    p("s_cbranch_scc1 AUXR")
    for u in range(2):
        p(f"ds_read_b64_tr_b16 v[{40+4*u}:{41+4*u}], v6 offset:{XTRA + u*1024}")
        p(f"ds_read_b64_tr_b16 v[{42+4*u}:{43+4*u}], v6 offset:{XTRA + u*1024+128}")
    p("s_branch AUXM")
    p.label("AUXR")
    for u in range(2): p(f"ds_read_b128 v[{40+4*u}:{43+4*u}], v7 offset:{GATE_L + u*64}")
    p.label("AUXM")
    p("s_waitcnt lgkmcnt(0)")
    p(f"s_cmp_eq_u32 s{S_MD}, 1")
    p("s_cbranch_scc1 AUXB")
    for u in range(2):
        p(f"v_mfma_f32_16x16x32_bf16 v[64:67], v[{40+4*u}:{43+4*u}], v[{32+4*u}:{35+4*u}], v[64:67]")
    p("s_branch AUXC")
    p.label("AUXB")
    for u in range(2):
        p(f"v_mfma_f32_16x16x32_bf16 v[64:67], v[{32+4*u}:{35+4*u}], v[{40+4*u}:{43+4*u}], v[64:67]")
    p.label("AUXC")
    p(f"s_cmp_lt_u32 s{S_N}, 8")
    p("s_cbranch_scc1 AUXL")
    p(f"s_lshl_b32 s3, s{S_RB}, 3")
    p(f"s_add_u32 s62, s{S_TL}, s3")
    p("s_lshr_b32 s3, s62, 1")
    p("s_lshl_b32 s3, s3, 10")
    p("s_and_b32 s63, s62, 1")
    p("s_lshl_b32 s66, s62, 1")
    p(f"s_add_u32 s66, s66, s{S_MD}")
    p("s_lshl_b32 s66, s66, 7")
    p(f"s_add_u32 s66, s66, {MF:#x}")
    p.pad(4)
    p(f"s_cmp_eq_u32 s{S_MD}, 1")
    p("s_cbranch_scc1 AUXV")
    p(f"s_cmp_eq_u32 s{S_MD}, 0")
    p("s_cbranch_scc1 AUXK")
    p("s_mov_b32 s66, 0")
    p(f"s_cmp_eq_u32 s{S_MD}, 3")
    p("s_cbranch_scc1 ASET")
    p(f"v_mul_f32 v64, {f2u(-LOG2E):#x}, v64")
    p("v_exp_f32 v64, v64")
    p("v_add_f32 v64, 1.0, v64")
    p("v_rcp_f32 v28, v64")
    p("s_lshl_b32 s3, s62, 6")
    p(f"s_add_u32 s3, s3, {GT:#x}")
    p("v_lshlrev_b32 v8, 2, v1")
    p("s_mov_b64 exec, 0xffff")
    p(f"buffer_store_dword v28, v8, {W}, s3 offen sc1")
    p("s_mov_b64 exec, -1")
    p("s_lshl_b32 s66, s62, 7")
    p(f"s_add_u32 s66, s66, {GG:#x}")
    p("s_branch ASET")
    p.label("AUXK")
    for j in range(4): p(f"v_mul_f32 v{64+j}, {f2u(0.25*LOG2E):#x}, v{64+j}")
    p("v_and_b32 v24, 1, v22")
    p("v_lshl_add_u32 v24, v24, 5, v23")
    p("v_lshlrev_b32 v24, 4, v24")
    p("v_lshrrev_b32 v25, 1, v22")
    p("v_lshl_add_u32 v24, v25, 3, v24")
    p("s_lshl_b32 s63, s63, 8")
    p(f"s_add_u32 s3, s3, {KF:#x}")
    p("s_branch AUXS")
    p.label("AUXV")
    p("v_lshrrev_b32 v24, 1, v22")
    p("v_lshl_add_u32 v24, v24, 4, v23")
    p("v_lshlrev_b32 v24, 4, v24")
    p("v_and_b32 v25, 1, v22")
    p("v_lshl_add_u32 v24, v25, 3, v24")
    p("s_lshl_b32 s63, s63, 9")
    p(f"s_add_u32 s3, s3, {VF:#x}")
    p.label("AUXS")
    p("s_add_u32 s3, s3, s63")
    for j in range(2): p(f"v_cvt_pk_bf16_f32 v{28+j}, v{64+2*j}, v{65+2*j}")
    p(f"buffer_store_dwordx2 v[28:29], v24, {W}, s3 offen sc1")
    p("s_branch ASET")
    p.label("LAY")
    S_U, S_HP, S_SWU = 62, 63, 64
    p(f"s_lshl_b32 s{S_U}, s{S_RB}, 3")
    p(f"s_add_u32 s{S_U}, s{S_U}, s{S_CB}")
    p(f"s_cmp_lt_u32 s{S_U}, 64")
    p(f"s_cselect_b64 s[{SE}:{SE+1}], s[18:19], s[8:9]")
    p(f"s_mov_b32 s{SE+2}, 0x80000")
    p(f"s_bfe_u32 s{S_HP}, s{S_U}, 0x40002")
    p(f"s_and_b32 s{S_SWU}, s{S_U}, 3")
    p(f"s_lshl_b32 s3, s{S_HP}, 15")
    p(f"s_lshl_b32 s65, s{S_SWU}, 8")
    p("s_add_u32 s3, s3, s65")
    p(f"s_lshl_b32 s65, s{S_A}, 13")
    p("s_add_u32 s3, s3, s65")
    p("v_lshlrev_b32 v24, 4, v23")
    p("v_lshl_add_u32 v24, v22, 10, v24")
    p(f"s_lshl_b32 s65, s{S_A}, 11")
    p(f"s_add_u32 m0, s65, {XTRA}")
    p("s_add_u32 s65, s3, 4096")
    p(f"buffer_load_dwordx4 v24, s[{SE}:{SE+3}], s3 offen lds")
    p("s_add_u32 m0, m0, 1024")
    p("v_lshlrev_b32 v8, 2, v1")
    p(f"buffer_load_dwordx4 v24, s[{SE}:{SE+3}], s65 offen lds")
    p(f"s_cmp_eq_u32 s{S_A}, 1")
    p("s_cbranch_scc0 NOMK")
    p(f"s_lshl_b32 s65, s{S_U}, 8")
    p(f"s_add_u32 s65, s65, {KVF:#x}")
    p("v_mov_b32 v10, -1")
    p(f"buffer_store_dword v10, v8, {W}, s65 offen sc1")
    p.label("NOMK")
    p(f"s_cmp_lt_u32 s{S_U}, 64")
    p("s_cbranch_scc0 TA1")
    p("v_lshrrev_b32 v24, 1, v22")
    p("v_lshlrev_b32 v24, 4, v24")
    p("v_and_b32 v25, 1, v22")
    p("v_lshl_add_u32 v24, v25, 2, v24")
    p("v_add_u32 v24, v24, v20")
    p("v_lshlrev_b32 v24, 8, v24")
    p("v_lshl_add_u32 v24, v21, 4, v24")
    p("v_add_u32 v25, 8, v24")
    p(f"s_lshr_b32 s3, s{S_HP}, 1")
    p("s_lshl_b32 s3, s3, 2")
    p(f"s_add_u32 s3, s3, s{S_SWU}")
    p("s_lshl_b32 s3, s3, 14")
    p(f"s_and_b32 s65, s{S_HP}, 1")
    p("s_lshl_b32 s65, s65, 10")
    p("s_add_u32 s3, s3, s65")
    p(f"s_lshl_b32 s65, s{S_A}, 12")
    p("s_add_u32 s3, s3, s65")
    p(f"s_add_u32 s3, s3, {WBF:#x}")
    p("s_add_u32 s66, s3, 2048")
    p("s_branch TA2")
    p.label("TA1")
    p("v_lshrrev_b32 v24, 1, v22")
    p("v_lshl_add_u32 v24, v24, 2, v20")
    p("v_lshlrev_b32 v24, 8, v24")
    p("v_and_b32 v25, 1, v22")
    p("v_lshl_add_u32 v24, v25, 5, v24")
    p("v_lshl_add_u32 v24, v21, 3, v24")
    p("v_add_u32 v25, 4096, v24")
    p(f"s_lshl_b32 s3, s{S_SWU}, 17")
    p(f"s_lshl_b32 s65, s{S_HP}, 11")
    p("s_add_u32 s3, s3, s65")
    p(f"s_lshl_b32 s65, s{S_A}, 15")
    p("s_add_u32 s3, s3, s65")
    p(f"s_add_u32 s3, s3, {WAF:#x}")
    p("s_add_u32 s66, s3, 1024")
    p.label("TA2")
    p(f"s_lshl_b32 s65, s{S_A}, 6")
    p("v_add_u32 v24, s65, v24")
    p("v_add_u32 v25, s65, v25")
    p("s_barrier")
    p("s_waitcnt vmcnt(0)")
    p("s_barrier")
    for k, a in enumerate((24, 25)):
        p(f"ds_read_b64_tr_b16 v[{28+4*k}:{29+4*k}], v{a} offset:{XTRA}")
        p(f"ds_read_b64_tr_b16 v[{30+4*k}:{31+4*k}], v{a} offset:{XTRA + 2048}")
    p("v_add_u32 v10, 1, v26")
    p("s_waitcnt lgkmcnt(0)")
    p(f"buffer_store_dwordx4 v[28:31], v12, {W}, s3 offen sc1")
    p(f"buffer_store_dwordx4 v[32:35], v12, {W}, s66 offen sc1")
    p(f"s_lshl_b32 s66, s{S_U}, 2")
    p(f"s_add_u32 s66, s66, {TF:#x}")
    p("s_barrier")
    p("s_barrier")
    p("s_barrier")
    p("s_waitcnt vmcnt(0)")
    p("s_barrier")
    p(f"s_cmp_eq_u32 s{S_A}, 0")
    p("s_cbranch_scc0 NOTF")
    p("s_mov_b64 exec, 1")
    p(f"buffer_store_dword v10, v27, {W}, s66 offen sc1")
    p("s_mov_b64 exec, -1")
    p.label("NOTF")
    p("s_mov_b32 s66, 0")
    p("s_barrier")
    p("s_barrier")
    p.label("ASET")
    p("v_add_u32 v26, 1, v26")
    p("s_setprio 3")
    p(f"v_readfirstlane_b32 s{S_NON}, v26")
    attn_setup(p)
    p("s_cmp_eq_u32 s66, 0")
    p("s_cbranch_scc1 NOPUB")
    p("s_waitcnt vmcnt(0)")
    p("s_mov_b64 exec, 1")
    p(f"buffer_store_dword v26, v27, {W}, s66 offen sc1")
    p("s_mov_b64 exec, -1")
    p.label("NOPUB")
    p.stamp(8)
    lds_wait(p, "AW", GCNT if 'late' in exp else GCN2, 4, 3, 120, 2)
    p.stamp(2)
    mf_wait(p, "OMF")
    p.stamp(7)
    kv_loads(p, 0, 8)
    p(f"ds_add_u32 v3, v2 offset:{LDI1}")
    p(f"s_lshl_b32 s3, s{S_A}, 13")
    p(f"s_add_u32 s3, s3, s{S_QO}")
    p(f"s_lshl_b32 s10, s{S_A}, 11")
    p(f"s_add_u32 m0, s10, {QL}")
    p("s_add_u32 s11, s3, 4096")
    p(f"buffer_load_dwordx4 v112, {W}, s3 offen sc1 lds")
    p("s_add_u32 m0, m0, 1024")
    p("s_nop 0")
    p(f"buffer_load_dwordx4 v112, {W}, s11 offen sc1 lds")
    p(f"s_lshl_b32 m0, s{S_A}, 8")
    p.label("GO")
    p(f"v_add_u32 v0, {QL}, v0")
    p.stamp(9)
    p("s_waitcnt vmcnt(23)")
    p(f"v_mfma_f32_32x32x16_bf16 v[{S0}:{S0+15}], {Kf(0)}, v[{Q}:{Q+3}], 0")
    p.stamp(3)
    attn_main(p, ladder)
    ob = Or(7)
    p(f"v_smfmac_f32_32x32x32_bf16 v[{ob}:{ob+15}], {Vf(7,1)}, v[{Sr(1)+8}:{Sr(1)+15}], v2")
    for l in drain(ob, 7, False): p(l)
    p("s_waitcnt lgkmcnt(0)")
    p.stamp(4)
    p("s_barrier")
    p.stamp(5, True)
    p("s_barrier")
    p(f"ds_read_b32 v4, v3 offset:{REDO}")
    p("s_waitcnt lgkmcnt(0)")
    p("v_cmp_ne_u32 vcc, 0, v4")
    p("s_cbranch_vccnz SLOWA")
    p.dump_stamps(10, SWS, 2, S_W, STAMP2, (4, 5))
    p("s_endpgm")
    p.label("BP")
    j = Or(0) + 10
    p(f"ds_read2st64_b32 v[{j}:{j+1}], v3 offset0:{FF//256} offset1:{FF//256 + 1}")
    p("s_waitcnt lgkmcnt(0)")
    p(f"v_and_b32 v{j}, v{j}, v{j+1}")
    p(f"v_cmp_ne_u32 vcc, 1, v{j}")
    p("s_cbranch_vccz BPRET")
    spin(p, "BP", 4)
    p.label("QW")
    j = Or(1) + 10
    p(f"s_cmp_lt_u32 s{S_A}, 4")
    p("s_cbranch_scc0 QW2")
    p("s_waitcnt vmcnt(0)")
    p(f"ds_add_u32 v3, v2 offset:{QRDY}")
    p.label("QW2")
    p(f"ds_read_b32 v{j}, v3 offset:{QRDY}")
    p(f"ds_read_b128 v[{Q}:{Q+3}], v0 offset:1024")
    p("s_waitcnt lgkmcnt(1)")
    p(f"v_cmp_ne_u32 vcc, {cnt(4):#x}, v{j}")
    p("s_cbranch_vccz QWRET")
    spin(p, "QW2", 1)

    p.label("GEMM")
    p("v_lshlrev_b32 v28, 4, v0")
    for r in range(4): p(f"v_mov_b32 v{32+r}, 0")
    p(f"ds_write_b128 v28, v[32:35] offset:{CNT}")
    p(f"ds_write_b128 v28, v[32:35] offset:{CNT + 4096}")
    p("v_lshlrev_b32 v24, 2, v1")
    p("v_mov_b32 v25, 0")
    p("s_waitcnt lgkmcnt(0)")
    p(f"s_mov_b64 s[{SWS}:{SWS+1}], s[{P_WS}:{P_WS+1}]")
    p(f"s_mov_b32 s3, {EPO:#x}")
    p(f"buffer_load_dword v25, v25, {W}, s3 offen sc1")
    p("s_getpc_b64 s[62:63]")
    p.label("PC0")
    p(f"s_sub_u32 s62, s62, PC0-{name}")
    p("s_subb_u32 s63, s63, 0")
    p("s_bfe_u32 s3, s2, 0x30003")
    p("s_lshl_b32 s3, s3, 12")
    p("v_lshlrev_b32 v22, 4, v0")
    p("v_add_u32 v22, s3, v22")
    p("global_load_dwordx4 v[128:131], v22, s[62:63]")
    p("v_and_b32 v20, 31, v1")
    p("v_lshrrev_b32 v21, 5, v1")
    p("v_bfe_u32 v22, v1, 1, 3")
    p("v_xor_b32 v22, v22, v21")
    p("v_lshlrev_b32 v22, 4, v22")
    p("v_lshl_add_u32 v22, v20, 7, v22")
    p(f"s_lshr_b32 s3, s{S_W}, 1")
    p("s_lshl_b32 s3, s3, 13")
    p("v_add_u32 v2, s3, v22")
    for t in range(1, 4): p(f"v_xor_b32 v{2+t}, {t*32}, v2")
    for t in range(4): p(f"v_add_u32 v{6+t}, 0x10000, v{2+t}")
    for t in range(4): p(f"v_add_u32 v{12+t}, 0x20000, v{2+t}")
    p("v_bfe_u32 v22, v1, 2, 2")
    p("v_lshl_add_u32 v23, v21, 3, v22")
    p("v_lshlrev_b32 v23, 7, v23")
    p("v_bfe_u32 v26, v1, 4, 1")
    p("v_lshlrev_b32 v26, 1, v26")
    p("v_bfe_u32 v27, v1, 1, 1")
    p("v_or_b32 v26, v26, v27")
    p(f"s_and_b32 s3, s{S_W}, 1")
    p("s_lshl_b32 s3, s3, 2")
    p("v_or_b32 v26, s3, v26")
    p("v_bfe_u32 v27, v1, 3, 1")
    p("v_lshlrev_b32 v27, 2, v27")
    p("v_xor_b32 v26, v26, v27")
    p("v_lshl_add_u32 v23, v26, 4, v23")
    p("v_and_b32 v27, 1, v1")
    p("v_lshl_add_u32 v10, v27, 3, v23")
    p("v_add_u32 v11, 0x10000, v10")
    p("v_add_u32 v16, 0x20000, v10")
    p(f"s_mov_b32 s{S_L2E}, {f2u(LOG2E):#x}")
    p(f"s_mov_b32 s{S_L2E+1}, {f2u(LOG2E):#x}")
    p(f"s_mov_b32 s{S_EPS}, {f2u(1e-6):#x}")
    p(f"s_mov_b32 s{S_EPS+1}, {f2u(1e-6):#x}")
    p("s_waitcnt vmcnt(0)")
    p("v_add_u32 v25, 1, v25")
    p(f"v_readfirstlane_b32 s{S_NON}, v25")
    p("v_mov_b32 v23, 1")
    p.stamp(2)
    p(f"s_cmp_eq_u32 s{S_TY}, 0")
    p("s_cbranch_scc0 GKV")
    p(f"s_lshl_b32 s3, s{S_RB}, 2")
    p(f"s_and_b32 s62, s{S_W}, 2")
    p("s_add_u32 s3, s3, s62")
    p("s_lshl_b32 s3, s3, 5")
    p(f"s_lshl_b32 s62, s{S_CB}, 2")
    p("s_add_u32 s3, s3, s62")
    p(f"s_and_b32 s62, s{S_W}, 1")
    p("s_lshl_b32 s62, s62, 1")
    p("s_add_u32 s3, s3, s62")
    p("s_lshl_b32 s3, s3, 10")
    p("v_lshl_add_u32 v26, v1, 4, s3")
    p(f"s_mov_b32 s62, {QF + 32768:#x}")
    p(f"s_mov_b32 s63, {PQF:#x}")
    p(f"s_mov_b32 s64, {PQF + 32768:#x}")
    mainloop(p, True)
    p("s_setprio 3")
    F = 32
    assert QF == 0
    def qst(rt, e): return f"buffer_store_dwordx4 v[{F+rt*8+4*e}:{F+rt*8+4*e+3}], v26, {W}, {'0' if rt == 0 else 's62'} offen offset:{e*1024} sc1"
    def pst(rt, e): return f"buffer_store_dwordx4 v[{48+rt*8+4*e}:{48+rt*8+4*e+3}], v26, {W}, s{63+rt} offen offset:{e*1024} sc1"
    def publish(row, sflag, lab, vm):
        p(f"s_waitcnt vmcnt({vm})")
        p(f"ds_add_rtn_u32 v22, v24, v23 offset:{row}")
        p("s_waitcnt lgkmcnt(0)")
        p("v_cmp_ne_u32 vcc, 3, v22")
        p(f"s_cbranch_vccnz {lab}")
        p("s_mov_b64 exec, 1")
        p(f"buffer_store_dword v25, v24, {W}, s{sflag} offen sc1")
        p("s_mov_b64 exec, -1")
        p.label(lab)
    pack(p, acc(0, 1), F)
    p(qst(0, 0)); p(qst(0, 1))
    pack(p, acc(1, 1), F + 8)
    p(qst(1, 0)); p(qst(1, 1))
    p("v_mov_b32 v23, 1")
    p(f"s_lshl_b32 s65, s{S_RB}, 10")
    p(f"s_lshl_b32 s3, s{S_CB}, 7")
    p("s_add_u32 s65, s65, s3")
    p(f"s_add_u32 s66, s65, {GP:#x}")
    p(f"s_add_u32 s65, s65, {GQ:#x}")
    for i in range(3): phi_half(p, acc(i >> 1, 0) + 8 * (i & 1), 48 + 4 * i, 128)
    publish(GCN2, 65, "NOGQ", 0)
    p(pst(0, 0))
    phi_half(p, acc(1, 0) + 8, 60, 128, [pst(0, 1), pst(1, 0)])
    p(pst(1, 1))
    p("s_branch SIDE")
    p.label("GKV")
    p(f"s_lshl_b32 s3, s{S_RB}, 1")
    p(f"s_lshr_b32 s62, s{S_W}, 1")
    p("s_add_u32 s3, s3, s62")
    p(f"s_mul_i32 s3, s3, {KVN*4}")
    p(f"s_lshl_b32 s62, s{S_CB}, 1")
    p(f"s_and_b32 s63, s{S_W}, 1")
    p("s_add_u32 s62, s62, s63")
    p(f"s_mul_i32 s62, s62, {2*1088}")
    p("s_add_u32 s3, s3, s62")
    p(f"s_add_u32 s3, s3, {KVP:#x}")
    p("v_and_b32 v22, 15, v1")
    p("v_lshl_add_u32 v22, v22, 1, v21")
    p("v_lshl_add_u32 v26, v22, 5, s3")
    p("v_lshl_add_u32 v27, v21, 5, s3")
    for j in range(4): p(f"v_mov_b32 v{28+j}, 0x3f803f80")
    mainloop(p, False)
    p("s_setprio 3")
    p(f"ds_add_u32 v24, v23 offset:{GCN2}")
    KVA, ZA = 136, 152
    def kvm(i):
        A = f"v[{48+4*i}:{48+4*i+3}]"; B = f"v[{F+4*i}:{F+4*i+3}]"
        c1 = "0" if i == 0 else f"v[{KVA}:{KVA+15}]"; c2 = "0" if i == 0 else f"v[{ZA}:{ZA+15}]"
        return [f"v_mfma_f32_32x32x16_bf16 v[{KVA}:{KVA+15}], {A}, {B}, {c1}",
                f"v_mfma_f32_32x32x16_bf16 v[{ZA}:{ZA+15}], {A}, v[28:31], {c2}"]
    phi_half(p, acc(0, 0), 48, 128)
    pack(p, acc(0, 1), F)
    phi_half(p, acc(0, 0) + 8, 52, 128, kvm(0))
    pack(p, acc(1, 1), F + 8)
    phi_half(p, acc(1, 0), 56, 128, kvm(1))
    phi_half(p, acc(1, 0) + 8, 60, 128, kvm(2))
    for l in kvm(3): p(l)
    p("s_mov_b32 exec_lo, 0x0000ffff")
    p("s_mov_b32 exec_hi, 0x0000ffff")
    for q in range(2):
        p(f"buffer_store_dwordx4 v[{KVA+4*q}:{KVA+4*q+3}], v26, {W}, 0 offen offset:{q*16} sc1")
    p("s_mov_b32 exec_lo, 0xffff0000")
    p("s_mov_b32 exec_hi, 0xffff0000")
    for q in range(2):
        p(f"buffer_store_dwordx4 v[{KVA+8+4*q}:{KVA+8+4*q+3}], v26, {W}, 0 offen offset:{1088+q*16} sc1")
    p("s_mov_b32 exec_lo, 1")
    p("s_mov_b32 exec_hi, 1")
    for e in range(2):
        for q in range(2):
            p(f"buffer_store_dwordx4 v[{ZA+8*e+4*q}:{ZA+8*e+4*q+3}], v27, {W}, 0 offen offset:{1024+e*1088+q*16} sc1")
    p("s_mov_b64 exec, -1")
    p("v_mov_b32 v23, 1")
    p(f"s_lshl_b32 s66, s{S_CB}, 11")
    p(f"s_lshl_b32 s3, s{S_RB}, 7")
    p("s_add_u32 s66, s66, s3")
    p(f"s_add_u32 s66, s66, {GK:#x}")

    p.label("SIDE")
    if STG: p.mute = set(range(5, 12))
    p.stamp(5)
    T = 8; ST = 72; ACC = 136
    S_SW = S_W
    logical_id(p)
    publish(GCNT, 66, "NOGF", 0)
    p.stamp(6)
    p("v_lshlrev_b32 v4, 2, v1")
    p("v_mov_b32 v6, 1")
    p("v_lshlrev_b32 v0, 4, v1")
    p("v_and_b32 v2, 7, v1")
    p("v_lshlrev_b32 v2, 2, v2")
    p("v_and_b32 v3, 31, v1")
    p("v_lshlrev_b32 v3, 2, v3")
    srd(p, SOUT, P_OUT, 2048 * 1024)
    p(f"s_mov_b32 s{S_B}, 0")
    p(f"s_mov_b32 s{S_MODE}, 0")
    p(f"s_mov_b64 s[{S_BAD}:{S_BAD+1}], 0")
    p(f"s_lshr_b32 s13, s{S_L}, 4")
    p("s_lshl_b32 s13, s13, 10")
    p("v_lshlrev_b32 v7, 3, v1")
    p(f"s_mov_b32 s11, {TF:#x}")
    p.label("TFW")
    p(f"buffer_load_dwordx2 v[{T}:{T+1}], v7, {W}, s11 offen sc1")
    p("s_waitcnt vmcnt(0)")
    for j in range(2): p(f"v_xor_b32 v{T+j}, s{S_NON}, v{T+j}")
    p(f"v_or_b32 v{T}, v{T}, v{T+1}")
    p(f"v_cmp_ne_u32 vcc, 0, v{T}")
    p("s_cbranch_vccz TFG")
    spin(p, "TFW", 8)
    p.label("TFG")
    p.stamp(8)
    p("s_cmp_lt_u32 s2, 68")
    p("s_cbranch_scc0 NORED")
    p(f"s_cmp_eq_u32 s{S_SW}, 1")
    p("s_cbranch_scc0 NORED")
    p("s_mul_i32 s3, s2, 7711")
    p("s_lshr_b32 s3, s3, 16")
    p("s_min_u32 s3, s3, 6")
    p("s_lshl_b32 s3, s3, 11")
    p(f"s_add_u32 s11, s3, {GK:#x}")
    p("v_lshlrev_b32 v7, 5, v3")
    flag_wait(p, "RKW", T, 7, "s11", 4)
    p("v_lshlrev_b32 v7, 3, v1")
    p("s_lshl_b32 s12, s2, 9")
    p(f"s_add_u32 s12, s12, {KVP:#x}")
    for i in range(32):
        p(f"buffer_load_dwordx2 v[{ST+2*i}:{ST+2*i+1}], v7, {W}, s12 offen sc1")
        if i < 31: p(f"s_add_u32 s12, s12, {KVN*4}")
    p("s_waitcnt vmcnt(0)")
    n = 32
    while n > 1:
        n //= 2
        for i in range(n):
            a, b = (2 * i, 2 * i + 1)
            p(f"v_pk_add_f32 v[{ST+2*i}:{ST+2*i+1}], v[{ST+2*a}:{ST+2*a+1}], v[{ST+2*b}:{ST+2*b+1}]")
    p(f"v_cvt_pk_bf16_f32 v{ST}, v{ST}, v{ST+1}")
    p("s_lshl_b32 s12, s2, 8")
    p(f"s_add_u32 s12, s12, {KVF:#x}")
    p(f"buffer_store_dword v{ST}, v4, {W}, s12 offen sc1")
    p.label("NORED")
    p(f"s_lshl_b32 s10, s{S_L}, 5")
    p(f"s_add_u32 s10, s10, {GT:#x}")
    p(f"s_lshl_b32 s11, s{S_RT}, 7")
    p(f"s_add_u32 s11, s11, {GT:#x}")
    p(f"s_lshl_b32 s3, s{S_RT}, 15")
    p(f"s_lshl_b32 s12, s{S_SW}, 13")
    p("s_add_u32 s3, s3, s12")
    p(f"s_add_u32 s3, s3, {PQF:#x}")
    p.dry_run("TL", "TL_RET")
    p.label("POLLST")
    p(f"ds_read_b32 v{T}, v4 offset:{LDI2}")
    p("s_waitcnt lgkmcnt(0)")
    p(f"v_cmp_ne_u32 vcc, {cnt(4):#x}, v{T}")
    p("s_cbranch_vccz START")
    spin(p, "POLLST", 4)
    p.label("START")
    p.stamp(7)
    p("s_mov_b32 s15, s11")
    p("s_mov_b32 s14, s3")
    def wld(dst, i): return f"buffer_load_dwordx4 v[{dst+4*i}:{dst+4*i+3}], v0, {W}, s3 offen offset:{(i&3)*1024} sc1"
    def load16(sreg, dst):
        p(f"s_mov_b32 s3, s{sreg}")
        for i in range(16):
            p(wld(dst, i))
            if i & 3 == 3 and i < 15: p("s_add_u32 s3, s3, 4096")
    p(f"s_lshl_b32 s{S_WA}, s{S_SUB}, 2")
    p(f"s_add_u32 s{S_WA}, s{S_WA}, s{S_SW}")
    p(f"s_lshl_b32 s{S_WA}, s{S_WA}, 15")
    p(f"s_add_u32 s{S_WA}, s{S_WA}, {WAF:#x}")
    load16(S_WA, ST)
    p(f"s_add_u32 s{S_WA}, s{S_WA}, 0x4000")
    p(f"s_add_u32 s11, s13, {GP:#x}")
    p("v_lshl_add_u32 v7, v2, 5, s11")
    p(f"s_lshl_b32 s11, s{S_RT}, 8")
    p(f"s_add_u32 s11, s11, {GG:#x}")
    p("v_and_b32 v5, 1, v1")
    p("v_lshl_add_u32 v5, v5, 7, s11")
    p("v_cmp_lt_u32 vcc, 31, v1")
    p("v_cndmask_b32 v7, v7, v5, vcc")
    flag_wait(p, "PPW", T, 7, "0", 8)
    p(f"buffer_load_dword v5, v2, {W}, s10 offen sc1")
    p(f"buffer_load_dword v6, v3, {W}, s15 offen sc1")
    for i in range(8):
        p(f"buffer_load_dwordx4 v[{T+32+4*i}:{T+32+4*i+3}], v0, {W}, s14 offen offset:{(i&3)*1024} sc1")
        if i == 3: p("s_add_u32 s14, s14, 4096")
    p("v_lshrrev_b32 v7, 2, v3")
    p("v_min_u32 v7, 16, v7")
    p(f"v_lshrrev_b32 v{T}, 5, v1")
    p(f"v_lshl_add_u32 v7, v7, 1, v{T}")
    p("v_lshlrev_b32 v7, 4, v7")
    p(f"s_mul_i32 s12, s{S_SW}, {8*544}")
    p(f"s_add_u32 s12, s12, {KVF:#x}")
    p(f"s_mov_b32 s{S_SP}, 0")
    p.label("POLLKV")
    for i in range(8):
        p(f"buffer_load_dwordx4 v[{T+4*i}:{T+4*i+3}], v7, {W}, s12 offen offset:{i*544} sc1")
    p("s_waitcnt vmcnt(0)")
    p(f"v_max3_u32 v{ACC}, v{T}, v{T+1}, v{T+2}")
    for i in range(3, 31, 2): p(f"v_max3_u32 v{ACC}, v{ACC}, v{T+i}, v{T+i+1}")
    p(f"v_max_u32 v{ACC}, v{ACC}, v{T+31}")
    p(f"v_cmp_eq_u32 vcc, -1, v{ACC}")
    p("s_cbranch_vccz GOTKV")
    p(f"s_add_u32 s{S_SP}, s{S_SP}, 1")
    p(f"s_cmp_gt_u32 s{S_SP}, 0x8000")
    p("s_cbranch_scc1 GOTKV")
    p("s_sleep 8")
    p("s_branch POLLKV")
    p.label("GOTKV")
    p.stamp(9)
    p(f"s_lshl_b32 s3, s{S_SW}, 13")
    p(f"s_add_u32 s3, s3, {OAF}")
    p("v_add_u32 v7, s3, v0")
    p(f"s_mov_b32 s11, {f2u(1e-6):#x}")
    p("v_sub_f32 v5, 1.0, v5")
    def oa_mfma(i):
        o = ACC + 16 * (i & 1)
        p(f"v_mfma_f32_32x32x16_bf16 v[{o}:{o+15}], v[{T+4*i}:{T+4*i+3}], v[{T+32+4*i}:{T+32+4*i+3}], 0")
    oa_mfma(0)
    for i in range(8):
        if i < 7: oa_mfma(i + 1)
        o = ACC + 16 * (i & 1)
        p(f"v_add_f32 v{o+8}, s11, v{o+8}")
        p(f"v_rcp_f32 v{o+8}, v{o+8}")
        p(f"v_mul_f32 v{o+8}, v6, v{o+8}")
        for j in range(8): p(f"v_mul_f32 v{o+j}, v{o+8}, v{o+j}")
        for j in range(4): p(f"v_cvt_pk_bf16_f32 v{o+12+j}, v{o+2*j}, v{o+2*j+1}")
        p(f"ds_write_b128 v7, v[{o+12}:{o+15}] offset:{i*1024}")
    p("v_mov_b32 v6, 1")
    p(f"ds_add_u32 v4, v6 offset:{OACNT}")
    load16(S_WA, T)
    p.label("POLLOA")
    p(f"ds_read_b32 v7, v4 offset:{OACNT}")
    p("s_waitcnt lgkmcnt(0)")
    p(f"v_cmp_ne_u32 vcc, 4, v7")
    p("s_cbranch_vccz GOTOA")
    spin(p, "POLLOA", 2)
    p.label("GOTOA")
    B = ACC + 16
    p(f"s_lshl_b32 s{S_WB}, s{S_SW}, 14")
    p(f"s_add_u32 s{S_WB}, s{S_WB}, {WBF:#x}")
    p(f"s_mov_b32 s3, s{S_WB}")
    p(f"s_add_u32 s{S_WB}, s{S_WB}, 0x10000")
    for half in range(2):
        src = ST if half == 0 else T
        for i in range(16):
            hd = half * 16 + i
            j = i & 1
            p(f"ds_read_b128 v[{B+4*j}:{B+4*j+3}], v0 offset:{OAF + hd*1024}")
            if i == 0 and half == 1: p("s_waitcnt vmcnt(16)")
            p("s_waitcnt lgkmcnt(0)")
            C = "0" if (half == 0 and i == 0) else f"v[{ACC}:{ACC+15}]"
            p(f"v_mfma_f32_32x32x16_bf16 v[{ACC}:{ACC+15}], v[{src+4*i}:{src+4*i+3}], v[{B+4*j}:{B+4*j+3}], {C}")
            if half == 0:
                p(wld(ST, i))
                if i & 3 == 3 and i < 15: p("s_add_u32 s3, s3, 4096")
    p(f"s_lshl_b32 s3, s{S_L}, 2")
    p(f"s_add_u32 s3, s3, s{S_SW}")
    p("s_lshl_b32 s10, s3, 12")
    p(f"s_add_u32 s10, s10, {OUTA:#x}")
    for q in range(4):
        p(f"buffer_store_dwordx4 v[{ACC+4*q}:{ACC+4*q+3}], v0, {W}, s10 offen offset:{q*1024} sc1")
    p("s_lshl_b32 s3, s3, 7")
    p(f"s_add_u32 s3, s3, {FA:#x}")
    p(f"v_mov_b32 v{T+1}, s{S_NON}")
    p("v_mov_b32 v7, 0")
    p("v_lshrrev_b32 v3, 5, v1")
    p("v_lshlrev_b32 v3, 7, v3")
    p("v_lshl_add_u32 v3, v2, 2, v3")
    p(f"v_bfe_u32 v{T}, v1, 4, 1")
    p(f"v_lshl_add_u32 v3, v{T}, 9, v3")
    p(f"v_add_u32 v3, {QL}, v3")
    MSK = f"s[{S_MSK}:{S_MSK+1}]"
    p(f"s_mov_b32 s{S_MSK}, 0x00ff00ff")
    p(f"s_mov_b32 s{S_MSK+1}, 0x00ff00ff")
    p(f"s_not_b64 exec, {MSK}")
    p(f"v_mov_b32 v3, {ZERO}")
    p("s_mov_b64 exec, -1")
    p(f"s_mov_b32 s{S_C8}, {cnt(8):#x}")
    p(f"s_mov_b32 s{S_DU}, s{S_SW}")
    p(f"s_mov_b32 s{S_LO}, {(127-80) << 23:#x}")
    p(f"s_mov_b32 s{S_RNG}, {180 << 23:#x}")
    p("s_waitcnt vmcnt(0)")
    p("s_mov_b64 exec, 1")
    p(f"buffer_store_dword v{T+1}, v7, {W}, s3 offen sc1")
    p("s_mov_b64 exec, -1")
    p(f"s_mov_b32 s{S_AF}, 0")
    p(f"s_lshl_b32 s3, s2, 2")
    p(f"s_add_u32 s3, s3, s{S_SW}")
    p("s_cmp_eq_u32 s3, 3")
    p("s_cbranch_scc0 NOEP")
    p(f"s_mov_b32 s12, {GG:#x}")
    p(f"s_mov_b32 s11, {GG + 8192:#x}")
    p(f"v_lshlrev_b32 v{T+2}, 7, v1")
    p.label("EPW")
    p(f"buffer_load_dword v{T}, v{T+2}, {W}, s12 offen sc1")
    p(f"buffer_load_dword v{T+1}, v{T+2}, {W}, s11 offen sc1")
    p("s_waitcnt vmcnt(0)")
    for j in range(2): p(f"v_xor_b32 v{T+j}, s{S_NON}, v{T+j}")
    p(f"v_or_b32 v{T}, v{T}, v{T+1}")
    p(f"v_cmp_ne_u32 vcc, 0, v{T}")
    p("s_cbranch_vccz EPG")
    spin(p, "EPW", 8)
    p.label("EPG")
    p(f"v_mov_b32 v{T}, s{S_NON}")
    p(f"s_mov_b32 s12, {EPO:#x}")
    p("s_mov_b64 exec, 1")
    p(f"buffer_store_dword v{T}, v7, {W}, s12 offen sc1")
    p("s_mov_b64 exec, -1")
    p.label("NOEP")
    p.stamp(10)

    p.label("BLK")
    p(f"s_lshl_b32 m0, s{S_DU}, 8")
    p(f"ds_read_b32 v{T+1}, v4 offset:{FF}")
    p(f"ds_read_addtid_b32 v{T} offset:{CNT}")
    p("s_waitcnt lgkmcnt(0)")
    p(f"v_cmp_ne_u32 vcc, s{S_C8}, v{T}")
    p("s_cbranch_vccz DUTY")
    p(f"s_cmp_eq_u32 s{S_AF}, 0")
    p("s_cbranch_scc1 GETA")
    p(f"v_cmp_ne_u32 vcc, 1, v{T+1}")
    p("s_cbranch_vccz GOTF")
    spin(p, "BLK", 4)
    p.label("DUTY")
    p(f"s_cmp_ge_u32 s{S_DU}, 6")
    p(f"s_cselect_b32 s3, 6, 0")
    p(f"s_sub_u32 s3, s{S_DU}, s3")
    p("s_lshl_b32 s10, s3, 14")
    p(f"s_add_u32 s10, s10, {PART}")
    p("v_add_u32 v7, s10, v0")
    p("s_lshl_b32 m0, s3, 11")
    Lr = T + 56
    for w in range(8): p(f"ds_read_addtid_b32 v{Lr+w} offset:{LPL + w*256}")
    for i in range(6): p(f"ds_read_b128 v[{T+4*i}:{T+4*i+3}], v7 offset:{i*1024}")
    p("s_waitcnt lgkmcnt(6)")
    p(f"v_pk_add_f32 v[{Lr}:{Lr+1}], v[{Lr}:{Lr+1}], v[{Lr+2}:{Lr+3}]")
    p(f"v_pk_add_f32 v[{Lr+4}:{Lr+5}], v[{Lr+4}:{Lr+5}], v[{Lr+6}:{Lr+7}]")
    for i in range(6, 14): p(f"ds_read_b128 v[{T+4*i}:{T+4*i+3}], v7 offset:{i*1024}")
    p(f"v_pk_add_f32 v[{Lr}:{Lr+1}], v[{Lr}:{Lr+1}], v[{Lr+4}:{Lr+5}]")
    p(f"v_add_f32 v6, v{Lr}, v{Lr+1}")
    p("s_waitcnt lgkmcnt(10)")
    for i in range(14, 16): p(f"ds_read_b128 v[{T+4*i}:{T+4*i+3}], v7 offset:{i*1024}")
    p(f"v_subrev_u32 v7, s{S_LO}, v6")
    p(f"v_rcp_f32 v6, v6")
    p(f"v_cmp_le_u32 vcc, s{S_RNG}, v7")
    def padd(w):
        for j in range(4):
            p(f"v_pk_add_f32 v[{T+2*j}:{T+2*j+1}], v[{T+2*j}:{T+2*j+1}], v[{T+8*w+2*j}:{T+8*w+2*j+1}]")
    padd(1)
    p(f"s_or_b64 s[{S_BAD}:{S_BAD+1}], s[{S_BAD}:{S_BAD+1}], vcc")
    p(f"v_mul_f32 v6, v5, v6")
    for w in range(2, 8):
        p(f"s_waitcnt lgkmcnt({2*(7-w)})")
        padd(w)
    for j in range(4):
        p(f"v_pk_mul_f32 v[{T+2*j}:{T+2*j+1}], v[{T+2*j}:{T+2*j+1}], v[6:7] op_sel_hi:[1,0]")
    for j in range(4): p(f"v_cvt_pk_bf16_f32 v{T+8+j}, v{T+2*j}, v{T+2*j+1}")
    p(f"s_lshl_b32 s3, s{S_DU}, 10")
    p("v_add_u32 v7, s3, v0")
    p("v_mov_b32 v6, 1")
    p(f"s_lshl_b32 m0, s{S_DU}, 8")
    p(f"ds_write_b128 v7, v[{T+8}:{T+11}] offset:{QL}")
    p(f"ds_write_addtid_b32 v6 offset:{FF}")
    p(f"s_mov_b32 s3, s{S_DU}")
    p(f"s_add_u32 s{S_DU}, s{S_DU}, 4")
    p(f"s_cmp_eq_u32 s3, s{S_B}")
    p(f"s_cselect_b32 s3, s{S_AF}, 0")
    p("s_cmp_eq_u32 s3, 0")
    p("s_cbranch_scc1 BLK")
    p.label("GOTF")
    p(f"ds_read_b128 v[{T+16}:{T+19}], v3")
    p(f"ds_read_b128 v[{T+20}:{T+23}], v3 offset:256")
    p("v_add_u32 v4, 256, v4")
    p(f"s_mov_b64 exec, {MSK}")
    p("v_add_u32 v3, 1024, v3")
    p("s_mov_b64 exec, -1")
    def bm(i):
        ct, ks = i >> 1, i & 1
        a = ACC + ct * 4
        p(f"v_mfma_f32_16x16x32_bf16 v[{a}:{a+3}], v[{ST+4*i}:{ST+4*i+3}], v[{T+16+4*ks}:{T+19+4*ks}], v[{a}:{a+3}]")
    p(f"s_mov_b32 s3, s{S_WB}")
    p(f"s_add_u32 s{S_WB}, s{S_WB}, 0x10000")
    p(f"s_cmp_eq_u32 s{S_B}, 6")
    p("s_waitcnt vmcnt(0) lgkmcnt(0)")
    p("s_cbranch_scc1 B6")
    for i in range(16):
        bm(i)
        p(wld(ST, i))
        if i & 3 == 3 and i < 15: p("s_add_u32 s3, s3, 4096")
    p(f"s_add_u32 s{S_B}, s{S_B}, 1")
    p(f"s_cmp_eq_u32 s{S_B}, 5")
    p("s_cbranch_scc0 BLK")
    p(f"s_lshl_b32 s10, s{S_SW}, 14")
    p(f"s_cmp_lt_u32 s{S_SW}, 2")
    p(f"s_mov_b32 s11, {PART}")
    p(f"s_cselect_b32 s11, {OAF}, s11")
    p(f"s_add_u32 s{S_W7}, s10, s11")
    p(f"s_mov_b32 m0, s{S_W7}")
    p(f"s_add_u32 s3, s{S_WB}, 0x10000")
    for i in range(16):
        p(f"buffer_load_dwordx4 v0, {W}, s3 offen offset:{(i&3)*1024} sc1 lds")
        if i & 3 == 3 and i < 15:
            p("s_add_u32 s3, s3, 4096")
            p("s_add_u32 m0, m0, 4096")
    p("s_branch BLK")
    p.label("B6")
    p(f"v_add_u32 v7, s{S_W7}, v0")
    for i in range(16):
        bm(i)
        if i >= 12: p(f"s_waitcnt lgkmcnt(11)")
        p(f"ds_read_b128 v[{ST+4*i}:{ST+4*i+3}], v7 offset:{i*1024}")
    QA, QLr, QF_, QG, OA = T + 32, T + 33, T + 34, T + 35, T + 36
    p(f"s_and_b32 s10, s{S_SW}, 1")
    p(f"s_lshr_b32 s11, s{S_SW}, 1")
    p("s_lshl_b32 s3, s10, 10")
    p("s_lshl_b32 s12, s11, 9")
    p("s_add_u32 s3, s3, s12")
    p(f"s_add_u32 s3, s3, {PART + PS}")
    p(f"v_lshl_add_u32 v{QA}, v1, 3, s3")
    p("v_lshrrev_b32 v7, 1, v1")
    p("s_lshl_b32 s3, s11, 7")
    p(f"s_add_u32 s3, s3, {LPL + 2048}")
    p(f"v_lshl_add_u32 v{QLr}, v7, 2, s3")
    p("v_lshlrev_b32 v6, 2, v7")
    p(f"ds_bpermute_b32 v{QG}, v6, v5")
    p("s_lshl_b32 s3, s10, 3")
    p("s_add_u32 s3, s3, s12")
    p(f"s_add_u32 s3, s3, {QL + 7*1024}")
    p(f"v_lshl_add_u32 v{QF_}, v7, 4, s3")
    p("v_and_b32 v7, 1, v1")
    p(f"v_lshl_add_u32 v{QF_}, v7, 2, v{QF_}")
    p(f"v_lshlrev_b32 v{OA}, 8, v2")
    p("v_lshrrev_b32 v7, 4, v1")
    p(f"v_lshl_add_u32 v{OA}, v7, 4, v{OA}")
    p(f"s_lshl_b32 s{S_OO}, s{S_L}, 13")
    p(f"s_lshl_b32 s10, s{S_SW}, 8")
    p(f"s_add_u32 s{S_OO}, s{S_OO}, s10")
    p("v_lshlrev_b32 v4, 2, v1")
    p("v_mov_b32 v6, 1")
    p.stamp(11)
    p.label("LAST")
    p("s_waitcnt vmcnt(0) lgkmcnt(0)")
    p("s_barrier")
    p.hops_begin("TL")
    for i in range(4): p(f"ds_read2st64_b32 v[{T+24+2*i}:{T+25+2*i}], v{QLr} offset0:{2*i} offset1:{2*i+1}")
    for i in range(4): p(f"ds_read2st64_b64 v[{T+4*i}:{T+4*i+3}], v{QA} offset0:{8*i} offset1:{8*i+4}")
    p("s_waitcnt lgkmcnt(4)")
    p(f"v_pk_add_f32 v[{T+24}:{T+25}], v[{T+24}:{T+25}], v[{T+26}:{T+27}]")
    p(f"v_pk_add_f32 v[{T+28}:{T+29}], v[{T+28}:{T+29}], v[{T+30}:{T+31}]")
    p(f"v_pk_add_f32 v[{T+24}:{T+25}], v[{T+24}:{T+25}], v[{T+28}:{T+29}]")
    p(f"v_add_f32 v{T+24}, v{T+24}, v{T+25}")
    p(f"v_subrev_u32 v7, s{S_LO}, v{T+24}")
    p(f"v_rcp_f32 v{T+24}, v{T+24}")
    p(f"v_cmp_le_u32 vcc, s{S_RNG}, v7")
    p("s_waitcnt lgkmcnt(0)")
    n = 8
    while n > 1:
        n //= 2
        for i in range(n):
            p(f"v_pk_add_f32 v[{T+2*i}:{T+2*i+1}], v[{T+4*i}:{T+4*i+1}], v[{T+4*i+2}:{T+4*i+3}]")
        if n == 4: p(f"v_mul_f32 v{T+24}, v{QG}, v{T+24}")
    p(f"s_or_b64 s[{S_BAD}:{S_BAD+1}], s[{S_BAD}:{S_BAD+1}], vcc")
    p(f"v_pk_mul_f32 v[{T}:{T+1}], v[{T}:{T+1}], v[{T+24}:{T+25}] op_sel_hi:[1,0]")
    p(f"v_cvt_pk_bf16_f32 v{T}, v{T}, v{T+1}")
    p("s_cbranch_scc0 OKL")
    p(f"ds_write_b32 v4, v6 offset:{REDO}")
    p.label("OKL")
    p(f"ds_write_b32 v{QF_}, v{T}")
    p("s_waitcnt lgkmcnt(0)")
    p("s_barrier")
    p(f"ds_read_b128 v[{T+16}:{T+19}], v3")
    p(f"ds_read_b128 v[{T+20}:{T+23}], v3 offset:256")
    p(f"ds_read_b32 v7, v4 offset:{REDO}")
    p("s_waitcnt lgkmcnt(0)")
    p("v_cmp_ne_u32 vcc, 0, v7")
    p("s_cbranch_vccnz SLOWS")
    def fin(i):
        for j in range(4):
            p(f"v_cvt_pk_bf16_f32 v{T+4*i+j}, v{ACC+8*i+2*j}, v{ACC+8*i+2*j+1}")
        p(f"s_mov_b64 exec, {MSK}")
        p(f"buffer_store_dwordx4 v[{T+4*i}:{T+4*i+3}], v{OA}, s[{SOUT}:{SOUT+3}], s{S_OO} offen offset:{i*64}")
        if i < 3: p("s_mov_b64 exec, -1")
    for i in range(12): bm(i)
    fin(0)
    for i in range(12, 16): bm(i)
    for i in range(1, 4): fin(i)
    p.hops_end("TL_RET", HOP)
    p.stamp(12)
    if stamps: p("s_waitcnt vmcnt(0)")
    p.stamp(13); p.stamp(14, True)
    p.dump_stamps(15, SWS, 2, S_W, STAMP2, (4, 5))
    p("s_endpgm")

    def geta_loads(dst):
        p("v_lshrrev_b32 v7, 4, v1")
        p("v_lshlrev_b32 v7, 10, v7")
        p("v_lshl_add_u32 v7, v2, 2, v7")
        p(f"s_lshl_b32 s3, s{S_RT}, 2")
        p(f"s_add_u32 s3, s3, s{S_SW}")
        p("s_lshl_b32 s3, s3, 14")
        p(f"s_lshl_b32 s10, s{S_SUB}, 7")
        p("s_add_u32 s3, s3, s10")
        p(f"s_add_u32 s3, s3, {OUTA:#x}")
        for ct in range(8):
            p(f"buffer_load_dwordx4 v[{dst+4*ct}:{dst+4*ct+3}], v7, {W}, s3 offen offset:{(ct&1)*512} sc1")
            if ct & 1 and ct < 7: p("s_add_u32 s3, s3, 4096")
    p.label("GETA")
    p("v_lshrrev_b32 v7, 4, v1")
    p("v_lshlrev_b32 v7, 7, v7")
    p(f"s_lshl_b32 s3, s{S_RT}, 2")
    p(f"s_add_u32 s3, s3, s{S_SW}")
    p("s_lshl_b32 s3, s3, 9")
    p(f"s_add_u32 s3, s3, {FA:#x}")
    p(f"buffer_load_dword v{T}, v7, {W}, s3 offen sc1")
    p("s_waitcnt vmcnt(0)")
    p(f"v_cmp_ne_u32 vcc, s{S_NON}, v{T}")
    p("s_cbranch_vccz GOTA")
    spin(p, "BLK", 4)
    p.label("GOTA")
    p(f"s_lshl_b32 s3, s{S_L}, 13")
    p(f"buffer_load_dword v{ACC}, v2, s[{SOUT}:{SOUT+3}], s3 offen")
    geta_loads(ACC)
    p(f"s_mov_b32 s{S_AF}, 1")
    p("s_branch BLK")

    p.label("SLOWS")
    p(f"s_cmp_eq_u32 s{S_MODE}, 0")
    p("s_cbranch_scc0 SLOWS2")
    p(f"s_mov_b32 s{S_MODE}, 1")
    p(f"s_mov_b32 s{S_B}, -1")
    p(f"v_mov_b32 v7, 0xff800000")
    p(f"s_lshl_b32 m0, s{S_SW}, 8")
    p.pad(8)
    p(f"ds_write_addtid_b32 v7 offset:{MXT}")
    geta_loads(ACC)
    p(f"s_lshl_b32 s{S_WB}, s{S_SW}, 14")
    p(f"s_add_u32 s{S_WB}, s{S_WB}, {WBF:#x}")
    p("s_waitcnt lgkmcnt(0)")
    p("s_barrier")
    p("s_barrier")
    p("s_branch SLOWS3")
    p.label("SLOWS2")
    for i in range(16): bm(i)
    p.label("SLOWS3")
    p(f"s_add_u32 s{S_B}, s{S_B}, 1")
    p(f"s_cmp_eq_u32 s{S_B}, 8")
    p("s_cbranch_scc1 SLOWF")
    load16(S_WB, ST)
    p(f"s_add_u32 s{S_WB}, s{S_WB}, 0x10000")
    p("s_branch LAST")
    p.label("SLOWF")
    p.pad(8)
    for i in range(4): fin(i)
    p("s_endpgm")

    p.label("SLOWA")
    S1 = S0 + 16; C = O0 + 16
    QO, MA, MX = S1, S1 + 1, S1 + 2
    p(f"v_lshrrev_b32 v{S1+3}, 2, v3")
    q_offset(p, QO, S1 + 4, S1 + 3)
    p(f"v_and_b32 v{MA}, 0x7c, v3")
    p(f"s_mov_b32 s10, s{S_QO}")
    p(f"s_mov_b32 s{S_B}, 0")
    p("s_barrier")
    p.label("SLOWM")
    p(f"buffer_load_dwordx4 v[{Q}:{Q+3}], v{QO}, {W}, s10 offen sc1")
    p(f"v_mov_b32 v{MX}, 0xff800000")
    p("s_waitcnt vmcnt(0)")
    for t in range(8):
        p(f"v_mfma_f32_32x32x16_bf16 v[{S0}:{S0+15}], {Kf(t)}, v[{Q}:{Q+3}], 0")
        for i in range(8): p(f"v_max3_f32 v{MX}, v{MX}, v{S0+2*i}, v{S0+2*i+1}")
    p(f"ds_max_f32 v{MA}, v{MX} offset:{MXT}")
    p(f"v_add_u32 v{MA}, 128, v{MA}")
    p("s_add_u32 s10, s10, 4096")
    p(f"s_add_u32 s{S_B}, s{S_B}, 1")
    p(f"s_cmp_lt_u32 s{S_B}, 8")
    p("s_cbranch_scc1 SLOWM")
    p(f"v_and_b32 v{MA}, 0x7c, v3")
    p(f"s_mov_b32 s10, s{S_QO}")
    p(f"s_mov_b32 s{S_B}, 0")
    p("s_waitcnt lgkmcnt(0)")
    p("s_barrier")
    p.label("SLOWP")
    p(f"buffer_load_dwordx4 v[{Q}:{Q+3}], v{QO}, {W}, s10 offen sc1")
    p(f"ds_read_b32 v{MX}, v{MA} offset:{MXT}")
    for r in range(9): p(f"v_mov_b32 v{O0+r}, 0")
    p("s_waitcnt vmcnt(0) lgkmcnt(0)")
    for r in range(16): p(f"v_sub_f32 v{C+r}, 0, v{MX}")
    for t in range(8):
        p(f"v_mfma_f32_32x32x16_bf16 v[{S0}:{S0+15}], {Kf(t)}, v[{Q}:{Q+3}], v[{C}:{C+15}]")
        for i in range(16): p(f"v_exp_f32 v{S0+i}, v{S0+i}")
        for s in range(2):
            p(f"v_smfmac_f32_32x32x32_bf16 v[{O0}:{O0+15}], {Vf(t,s)}, v[{S0+8*s}:{S0+8*s+7}], v2")
    for l in drain(O0, 7, False): p(l)
    p(f"v_add_u32 v{MA}, 128, v{MA}")
    p("s_add_u32 s10, s10, 4096")
    p(f"s_add_u32 s{S_B}, s{S_B}, 1")
    p("s_waitcnt lgkmcnt(0)")
    p("s_barrier")
    p("s_barrier")
    p(f"s_cmp_lt_u32 s{S_B}, 8")
    p("s_cbranch_scc1 SLOWP")
    p.label("END")
    p("s_endpgm")
    return p
```

```python
import sys, os
sys.path.insert(0, os.path.dirname(__file__))
import build, f
NAME = build.NAME
out = sys.argv[1] if len(sys.argv) > 1 and sys.argv[1].endswith(".s") else f"cdna_kernels/{NAME}.s"
for a in sys.argv:
    if a.startswith("pm="): f.PM = a[3:].replace("+", " ")
    if a.startswith("rot="): f.ROT = int(a[4:])
    if a.startswith("msl="): f.MSL = int(a[4:])
    if a.startswith("kvat="): f.KVAT = int(a[5:])
f.STG = "stg" in sys.argv
kn = NAME + "_kernel"
lst = "stamps" in sys.argv or "list" in sys.argv
build.build([(kn, f.gen(kn, stamps="stamps" in sys.argv, exp=" ".join(sys.argv[2:])), 256, 768, f.LDS, 168)], out, f.NOTES, single=not lst)
print("wrote", out)
```

```python
from asm import Prog
from common import *

NOTES = """
One launch, 256 workgroups of 12 waves, two phases; hand-offs between workgroups go through d_ws with
write-through (sc1) stores, flags holding a per-launch nonce (epoch word found in d_ws + 1, written back at the
end of the launch) and sc1 loads.
Phase 1: input projections, one workgroup per 64 rows x 4 heads.  Waves 8-11 stream x (kept resident) and the W
tiles into LDS (LDS-DMA); waves 0-3 run the bf16 MFMA GEMM, first the MQA query columns, then q|k|v of the linear
branch with the phi() / kv-partial epilogue; waves 4-7 compute k, v and the gate from the resident x or re-lay both
output-projection weights into MFMA fragment order.
Phase 2: one workgroup per 8 rows x 32 heads.  Waves 4-11 keep a 256-key slice of K/V in registers and stream the
8 query blocks (S = K Q^T by MFMA, v_exp_f32, P.V and the row sum by sparse MFMA); waves 0-3 finish the linear
attention branch, reduce/normalise, run both output projections and write d_out.
Softmax shift: the first pass uses the stand-in shift 0; every row sum l is checked at run time to lie in
[2^-80, 2^100) (no overflow, no loss by underflow); if any row of the workgroup fails, the workgroup
recomputes its rows with the true row max subtracted (labels SLOWA / SLOWS).
"""

XRES = 65536
WSL = [0, 24576, 131072]
XT0, XT1 = 49152, 155648
GATE_L = 57344
LPL = 0
QL = 12288
OAF = QL + 9 * 1024
MXT = OAF
CNT = 58368
FF = CNT + 8 * 256
OACNT = FF + 8 * 256
LDI1 = OACNT + 256
LDI2 = LDI1 + 256
QRDY = LDI2 + 256
GCNT = QRDY + 256
GCN2 = GCNT + 256
XCH = GCN2 + 256
REDO = XCH + 256
ZERO = REDO + 256
ZEND = ZERO + 1024
assert ZEND <= 65536 and ZERO >= 0xdddd and GATE_L + 1024 <= CNT and OAF + 32768 <= CNT
PART = 65536
PS = 16384
LDS = PART + 6 * PS
assert LDS <= 163840
IDX = 0xdddd
ZOFF = ZERO - IDX
HOP = 64
ROT = 7
STG = False
MSL = 4
FULLF = True
DIAGP = False
PM = 'sc1'
EFB = 7
POLB = 10
TOUCH = False
STB = 0
P2E = 1
NEARLY = 2
RGATE = 1
GAB = 1
KGATE = 3
def cnt(n): return (IDX * n) & 0xffffffff

P_GATE, P_OUT, P_DBG, P_WS = 20, 22, 24, 26
SWS, SX, SW1, SW2 = 28, 32, 36, 40
SOUT, SE, SDBG = 32, 36, 40
S_W, S_A = 44, 45
S_RB, S_HG, S_KS, S_SOX, S_SO1, S_SO2, S_MX, S_MW, S_N, S_NON = 46, 47, 49, 51, 52, 53, 54, 55, 56, 57
S_L2E, S_EPS = 58, 60
S_L, S_RT, S_SUB, S_B, S_BAD, S_QO, S_MODE, S_WB, S_WA, S_DU = 46, 47, 48, 49, 50, 52, 53, 54, 55, 56
S_C8, S_LO, S_RNG, S_AF, S_MSK, S_W7, S_OO, S_RED, S_SP = 58, 59, 60, 61, 62, 64, 65, 66, 67
W = f"s[{SWS}:{SWS+3}]"

def srd(p, d, base, size):
    p(f"s_mov_b64 s[{d}:{d+1}], s[{base}:{base+1}]")
    p(f"s_mov_b32 s{d+2}, {size:#x}")
    p(f"s_mov_b32 s{d+3}, 0x20000")

def spin(p, lab, sleep, lim="0x100000"):
    p(f"s_add_u32 s{S_SP}, s{S_SP}, 1")
    p(f"s_cmp_gt_u32 s{S_SP}, {lim}")
    p("s_cbranch_scc1 END")
    p(f"s_sleep {sleep}")
    p(f"s_branch {lab}")

QB, QA, KA, VA = 64, 80, 96, 112

def wa(n):
    b = WSL[n % 3]
    return (11, 0) if b >= 65536 else (10, b)

def lds_wait(p, lab, row, val, vaddr, vtmp, sleep, op="ne"):
    p.label(lab)
    p(f"ds_read_b32 v{vtmp}, v{vaddr} offset:{row}")
    p("s_waitcnt lgkmcnt(0)")
    p(f"v_cmp_{op}_u32 vcc, {val}, v{vtmp}")
    p(f"s_cbranch_vccz {lab}_G")
    spin(p, lab, sleep)
    p.label(f"{lab}_G")

def steps():
    S = [(1, i) for i in range(4)] + [(2, i) for i in range(P2E, 8)]
    for i in range(P2E): S.insert(1 + 2 * i, (2, i))
    return S

def gemm(p, hooks):
    S = steps()
    def rd1(n, k):
        i = S[n][1]
        b = 136 + (k & 3) * 8; a, o = wa(n); hs, t = k >> 2, k & 3
        return [f"ds_read_b128 v[{b}:{b+3}], v{2+t} offset:{(2*i+hs)*8192}",
                f"ds_read_b64_tr_b16 v[{b+4}:{b+5}], v{a} offset:{o + hs*8192 + 16*t*128}",
                f"ds_read_b64_tr_b16 v[{b+6}:{b+7}], v{a} offset:{o + hs*8192 + (16*t+4)*128}"]
    def rd2(n, t):
        b = 32 + (t & 1) * 16; a, o = wa(n)
        X = [f"ds_read_b128 v[{b}:{b+3}], v{2+t} offset:{S[n][1]*8192}"]
        Wr = [[f"ds_read_b64_tr_b16 v[{b+4+4*u+2*q}:{b+5+4*u+2*q}], v{a} offset:{o + u*8192 + (16*t+4*q)*128}" for q in range(2)] for u in range(3)]
        return [X + Wr[0], Wr[1], Wr[2]]
    def head(n):
        return [rd1(n, k) for k in range(3)] if S[n][0] == 1 else rd2(n, 0)
    def bar(n):
        for l in hooks.get(('B', n), []): p(l)
        p("s_barrier")
        for l in hooks.get(('A', n), []): p(l)
        if STG and 1 <= n <= 7: p.stamp(4 + n, force=True)
        if n == 11: p.stamp(4)
    bar(0)
    p.stamp(3)
    for g in head(0):
        for l in g: p(l)
    for n, (ty, i) in enumerate(S):
        if ty == 1:
            for k in range(8):
                b = 136 + (k & 3) * 8
                p(f"s_waitcnt lgkmcnt({3*min(2, 7-k)})")
                if k == 7: bar(n + 1)
                p(f"v_mfma_f32_32x32x16_bf16 v[{QB}:{QB+15}], v[{b+4}:{b+7}], v[{b}:{b+3}], {'0' if (i, k) == (0, 0) else f'v[{QB}:{QB+15}]'}")
                if k + 3 < 8:
                    for l in rd1(n, k + 3): p(l)
            for g in head(n + 1):
                for l in g: p(l)
            continue
        for t in range(4):
            b = 32 + (t & 1) * 16
            X = f"v[{b}:{b+3}]"; Wv = [f"v[{b+4+4*u}:{b+7+4*u}]" for u in range(3)]
            first = (i == 0 and t == 0)
            M = [f"v_mfma_f32_32x32x16_bf16 v[{QA}:{QA+15}], {Wv[0]}, {X}, {'1.0' if first else f'v[{QA}:{QA+15}]'}",
                 f"v_mfma_f32_32x32x16_bf16 v[{KA}:{KA+15}], {X}, {Wv[1]}, {'1.0' if first else f'v[{KA}:{KA+15}]'}",
                 f"v_mfma_f32_32x32x16_bf16 v[{VA}:{VA+15}], {X}, {Wv[2]}, {'0' if first else f'v[{VA}:{VA+15}]'}"]
            last = (n == 11 and t == 3)
            nx = None if last else (rd2(n, t + 1) if t < 3 else head(n + 1))
            p("s_waitcnt lgkmcnt(4)"); p(M[0])
            for l in hooks.get((n, t), []): p(l)
            if t < 3:
                for l in nx[0]: p(l)
                p("s_waitcnt lgkmcnt(5)"); p(M[1])
                for l in nx[1]: p(l)
                p("s_waitcnt lgkmcnt(5)"); p(M[2])
                for l in nx[2]: p(l)
            else:
                p("s_waitcnt lgkmcnt(0)")
                if not last:
                    bar(n + 1)
                    for l in nx[0]: p(l)
                p(M[1])
                if nx:
                    for l in nx[1]: p(l)
                p(M[2])
                if nx:
                    for l in nx[2]: p(l)

def phi_half(p, b, F, T, hooks=()):
    hooks = list(hooks)
    for j in range(4):
        p(f"v_pk_fma_f32 v[{T+2*j}:{T+2*j+1}], v[{b+2*j}:{b+2*j+1}], s[{S_L2E}:{S_L2E+1}], s[{S_L2E}:{S_L2E+1}] neg_lo:[0,0,1] neg_hi:[0,0,1]")
    for j in range(8):
        p(f"v_exp_f32_e64 v{T+j}, v{T+j} clamp")
        if j in (0, 7) and hooks: p(hooks.pop(0))
    for j in range(8):
        p(f"v_max_f32 v{T+j}, v{T+j}, v{b+j}")
    for j in range(4):
        p(f"v_pk_add_f32 v[{T+2*j}:{T+2*j+1}], v[{T+2*j}:{T+2*j+1}], s[{S_EPS}:{S_EPS+1}]")
    for j in range(4):
        p(f"v_cvt_pk_bf16_f32 v{F+j}, v{T+2*j}, v{T+2*j+1}")
    assert not hooks

def pack(a, F):
    return [f"v_cvt_pk_bf16_f32 v{F+j}, v{a+2*j}, v{a+2*j+1}" for j in range(8)]

Q, K0, V0, S0, O0 = 4, 8, 40, 104, 136
def Kf(t): return f"v[{K0+4*t}:{K0+4*t+3}]"
def Vf(t, s): return f"v[{V0+8*t+4*s}:{V0+8*t+4*s+3}]"
def Sr(i): return S0 + 16 * (i & 1)
def Or(i): return O0 + 16 * (i & 1)

def drain(ob, b, count=True):
    slot = b % 6
    off = (slot & 3) * PS
    L = [f"ds_write_b128 v1, v[{ob}:{ob+3}] offset:{off}",
         f"ds_write_b128 v1, v[{ob+4}:{ob+7}] offset:{off + 1024}",
         f"ds_write_addtid_b32 v{ob+8} offset:{LPL + slot*2048}"]
    if count: L.append(f"ds_add_u32 v3, v2 offset:{CNT + b*256}")
    return L

def attn_main(p, ladder, pos=(1, 4, 10)):
    for b in range(8):
        for t in range(8):
            sc, sn = Sr(t), Sr(t + 1)
            extra = {}
            ob = Or(b + 1)
            def put(i, L):
                for k, l in enumerate(L): extra.setdefault(i + k, []).append(l)
            if t == 1 and b > 0:
                if b - 1 == 4: put(0, ["v_add_u32 v1, 0x10000, v1"])
                if b - 1 == 6:
                    put(0, ["v_subrev_u32 v1, 0x10000, v1"])
                    extra.setdefault(1, []).extend(["s_branch BP", "BPRET:"])
                put(2, drain(ob, b - 1))
                if b - 1 in ladder: put(6, [f"s_setprio {ladder[b-1]}"])
            if t == 2 and 0 < b < 7:
                put(2, [f"ds_read_b128 v[{ob}:{ob+3}], v2 offset:{ZOFF}",
                        f"ds_read_b128 v[{ob+4}:{ob+7}], v2 offset:{ZOFF}"])
                put(5, [f"ds_read_b32 v{ob+8}, v2 offset:{ZOFF}"])
            if t == 6 and 0 < b < 7:
                put(pos[1] + 1, [f"ds_read_b128 v[{Q}:{Q+3}], v0 offset:{(b+1)*1024}"])
            if t == 7 and b == 0:
                extra.setdefault(1, []).extend(["s_branch QW", "QWRET:"])
            for i in range(16):
                p(f"v_exp_f32 v{sc+i}, v{sc+i}")
                if i == pos[0] and (b, t) != (0, 0):
                    op = Or(b) if t > 0 else Or(b + 1)
                    p(f"v_smfmac_f32_32x32x32_bf16 v[{op}:{op+15}], {Vf((t-1)&7,1)}, v[{sn+8}:{sn+15}], v2")
                if i == pos[1] and (b, t) != (7, 7):
                    if t == 7: p("s_waitcnt vmcnt(0) lgkmcnt(0)" if b == 0 else "s_waitcnt lgkmcnt(0)")
                    elif b == 0: p(f"s_waitcnt vmcnt({3*(6-t)+2})")
                    p(f"v_mfma_f32_32x32x16_bf16 v[{sn}:{sn+15}], {Kf((t+1)&7)}, v[{Q}:{Q+3}], 0")
                if i == pos[2]:
                    oc = Or(b)
                    p(f"v_smfmac_f32_32x32x32_bf16 v[{oc}:{oc+15}], {Vf(t,0)}, v[{sc}:{sc+7}], v2")
                for l in extra.get(i, []): p(l)
        if b == 0: p.stamp(6)

def q_offset(p, dst, tmp, lane):
    p(f"v_bfe_u32 v{dst}, v{lane}, 3, 2")
    p(f"v_lshlrev_b32 v{dst}, 10, v{dst}")
    p(f"v_and_b32 v{tmp}, 0x27, v{lane}")
    p(f"v_lshl_add_u32 v{dst}, v{tmp}, 4, v{dst}")

def logical_id(p):
    p("s_and_b32 s3, s2, 7")
    p("s_lshl_b32 s3, s3, 5")
    p(f"s_lshr_b32 s{S_L}, s2, 3")
    p(f"s_add_u32 s{S_L}, s{S_L}, s3")
    p(f"s_lshr_b32 s{S_RT}, s{S_L}, 2")
    p(f"s_and_b32 s{S_SUB}, s{S_L}, 3")
    p(f"s_lshl_b32 s{S_QO}, s{S_RT}, 15")
    p(f"s_lshl_b32 s10, s{S_SUB}, 7")
    p(f"s_add_u32 s{S_QO}, s{S_QO}, s10")

def attn_setup(p):
    logical_id(p)
    p(f"s_sub_u32 s{S_A}, s{S_W}, 4")
    p("v_lshlrev_b32 v3, 2, v1")
    q_offset(p, 112, 113, 1)
    p("v_lshlrev_b32 v0, 4, v1")
    p("v_lshrrev_b32 v114, 5, v1")
    p("v_and_b32 v115, 15, v1")
    p("v_lshl_add_u32 v114, v114, 4, v115")
    p("v_lshlrev_b32 v114, 4, v114")
    p(f"s_lshl_b32 s11, s{S_A}, 13")
    p(f"s_add_u32 s12, s11, {VF:#x}")
    p(f"s_add_u32 s11, s11, {KF:#x}")
    p("s_add_u32 s13, s11, 4096")
    p("s_add_u32 s14, s12, 4096")
    p("s_mov_b32 s16, 0x0000ffff")
    p("s_mov_b32 s17, 0x0000ffff")
    p(f"s_lshl_b32 s18, s{S_A}, 12")
    p(f"s_add_u32 s18, s18, {EF:#x}")
    p(f"s_lshr_b32 s19, s{S_L}, 3")
    p("s_lshl_b32 s19, s19, 10")
    p(f"s_add_u32 s19, s19, {EF:#x}")
    p("v_and_b32 v115, 15, v1")
    p("v_lshl_add_u32 v118, v115, 8, s18")
    p("v_and_b32 v115, 7, v1")
    p("v_lshl_add_u32 v115, v115, 7, s19")
    p("v_cmp_lt_u32 vcc, 31, v1")
    p("v_cndmask_b32 v118, v118, v115, vcc")
    p("v_and_b32 v116, 27, v1")
    p("v_cmp_eq_u32 vcc, 16, v116")
    p("v_mov_b32 v117, 0x3f803f80")
    p("v_cndmask_b32 v116, 0, v117, vcc")
    p("v_mov_b32 v117, v116")
    for r in range(32): p(f"v_pk_mov_b32 v[{V0+2*r}:{V0+2*r+1}], v[116:117], v[116:117]")
    for r in range(9): p(f"v_mov_b32 v{O0+r}, 0")
    for r in range(9): p(f"v_mov_b32 v{O0+16+r}, 0")
    p(f"v_mov_b32 v2, {IDX:#x}")
    p(f"s_lshl_b32 s3, s{S_A}, 11")
    p(f"s_add_u32 s3, s3, {PART}")
    p("v_add_u32 v1, s3, v0")
    p(f"s_lshl_b32 m0, s{S_A}, 8")

def kv_loads(p, t0, t1):
    if t0 == 0: p(f"buffer_load_dwordx4 v[{Q}:{Q+3}], v112, {W}, s{S_QO} offen sc1")
    for t in range(t0, t1):
        p(f"buffer_load_dwordx4 {Kf(t)}, v0, {W}, s{11 if t < 4 else 13} offen offset:{(t&3)*1024} sc1")
        p("s_mov_b64 exec, s[16:17]")
        for s in range(2):
            p(f"buffer_load_dwordx4 {Vf(t,s)}, v114, {W}, s{12 if t < 4 else 14} offen offset:{(t&3)*1024 + s*512} sc1")
        p("s_mov_b64 exec, -1")

def flag_store(p, vd, vl4, so):
    p("s_mov_b32 exec_hi, 0" if FULLF else "s_mov_b64 exec, 1")
    p(f"buffer_store_dword v{vd}, v{vl4}, {W}, s{so} offen sc1")
    p("s_mov_b64 exec, -1")

def flag_wait(p, lab, vt, va, so, sleep):
    p.label(lab)
    p(f"buffer_load_dword v{vt}, v{va}, {W}, {so} offen {PM}")
    p("s_waitcnt vmcnt(0)")
    if DIAGP and lab == "OMF":
        p("s_cmp_eq_u32 s69, 0"); p("s_cbranch_scc0 DG1"); p.stamp(8); p.label("DG1"); p("s_add_u32 s69, s69, 1")
    p(f"v_cmp_ne_u32 vcc, s{S_NON}, v{vt}")
    p(f"s_cbranch_vccz {lab}_G")
    p("s_mov_b64 exec, vcc")
    spin(p, lab, sleep)
    p.label(f"{lab}_G")
    p("s_mov_b64 exec, -1")

def gen(name, stamps=False, exp=''):
    ladder = {4: 2, 5: 1, 6: 0}
    p = Prog()
    p.stamps = stamps
    p.label(name)
    p.stamp(0, True); p.stamp(1)
    p("s_cmp_ge_u32 s2, 256")
    p("s_cbranch_scc1 END")
    p("s_load_dwordx16 s[4:19], s[0:1], 0")
    p("s_load_dwordx8 s[20:27], s[0:1], 64")
    p("v_lshrrev_b32 v21, 6, v0")
    p("v_and_b32 v1, 63, v0")
    p(f"v_readfirstlane_b32 s{S_W}, v21")
    p("s_bfe_u32 s3, s2, 0x30003")
    p("s_lshr_b32 s61, s2, 6")
    p(f"s_and_b32 s{S_RB}, s2, 6")
    p(f"s_lshl_b32 s{S_RB}, s{S_RB}, 2")
    p(f"s_add_u32 s{S_RB}, s{S_RB}, s3")
    p(f"s_and_b32 s{S_HG}, s2, 1")
    p(f"s_lshl_b32 s{S_HG}, s{S_HG}, 2")
    p(f"s_add_u32 s{S_HG}, s{S_HG}, s61")
    p(f"s_add_u32 s{S_KS}, s3, s61")
    p(f"s_lshl_b32 s{S_KS}, s{S_KS}, 1")
    p("s_lshr_b32 s60, s3, 2")
    p(f"s_add_u32 s{S_KS}, s{S_KS}, s60")
    p(f"s_and_b32 s{S_KS}, s{S_KS}, {ROT}")
    p(f"s_mov_b32 s{S_SP}, 0")
    p(f"s_mov_b32 s{SWS+2}, {WS_SIZE:#x}")
    p(f"s_mov_b32 s{SWS+3}, 0x20000")
    p(f"s_and_b32 s{S_A}, s{S_W}, 3")
    p(f"s_cmp_lt_u32 s{S_W}, 8")
    p("s_cbranch_scc1 NOTLD")
    p("s_setprio 2")
    p("v_lshrrev_b32 v20, 3, v1")
    p("v_and_b32 v21, 7, v1")
    p("v_lshrrev_b32 v22, 4, v1")
    p(f"s_lshl_b32 s3, s{S_A}, 4")
    p("v_add_u32 v20, s3, v20")
    p("v_xor_b32 v23, v21, v22")
    p("v_lshlrev_b32 v23, 4, v23")
    p("v_lshl_add_u32 v23, v20, 10, v23")
    p(f"s_lshl_b32 s3, s{S_RB}, 16")
    p("v_add_u32 v12, s3, v23")
    p("v_xor_b32 v13, 64, v12")
    p("v_add_u32 v13, 0x2000, v13")
    p("v_and_b32 v22, 1, v22")
    p("v_lshlrev_b32 v22, 2, v22")
    p("v_xor_b32 v21, v21, v22")
    p("v_lshlrev_b32 v21, 4, v21")
    p(f"s_lshl_b32 s3, s{S_HG}, 7")
    p("v_add_u32 v21, s3, v21")
    p("v_lshl_add_u32 v16, v20, 10, v21")
    p("v_add_u32 v17, 0x2000, v16")
    p(f"s_lshl_b32 s{S_MW}, s{S_A}, 11")
    p(f"s_mov_b32 s{SX+2}, {2048*1024:#x}")
    p(f"s_mov_b32 s{SX+3}, 0x20000")
    p(f"s_mov_b32 s{SW2+2}, {512*1024:#x}")
    p(f"s_mov_b32 s{SW2+3}, 0x20000")
    p(f"s_mov_b32 s62, s{S_KS}")
    p("s_waitcnt lgkmcnt(0)")
    p(f"s_mov_b64 s[{SX}:{SX+1}], s[4:5]")
    p(f"s_mov_b64 s[{SW2}:{SW2+1}], s[12:13]")
    for n, (ty, i) in enumerate(steps()):
        sl = WSL[n % 3]
        if ty == 1:
            for hs in range(2):
                p(f"s_lshl_b32 s{S_SOX}, s{S_KS}, 7")
                p(f"s_lshl_b32 s{S_SO2}, s{S_KS}, 16")
                for e in range(2):
                    p(f"s_add_u32 m0, s{S_MW}, {XRES + (2*i+hs)*8192 + e*1024:#x}")
                    p(f"buffer_load_dwordx4 v{12+e}, s[{SX}:{SX+3}], s{S_SOX} offen lds")
                for e in range(2):
                    p(f"s_add_u32 m0, s{S_MW}, {sl + hs*8192 + e*1024:#x}")
                    p(f"buffer_load_dwordx4 v{16+e}, s[{SW2}:{SW2+3}], s{S_SO2} offen lds")
                p(f"s_add_u32 s{S_KS}, s{S_KS}, 1")
                p(f"s_and_b32 s{S_KS}, s{S_KS}, 7")
        else:
            p(f"s_mul_i32 s{S_SO1}, s62, {64*3072:#x}")
            for u in range(3):
                for e in range(2):
                    p(f"s_add_u32 m0, s{S_MW}, {sl + u*8192 + e*1024:#x}")
                    p(f"buffer_load_dwordx4 v{18+e}, s[{SW1}:{SW1+3}], s{S_SO1} offen lds")
                if u < 2: p(f"s_add_u32 s{S_SO1}, s{S_SO1}, 1024")
            p("s_add_u32 s62, s62, 1")
            p("s_and_b32 s62, s62, 7")
        if n == 0:
            p("s_setprio 0")
            p("s_movk_i32 s60, 3072")
            p("v_mad_u32_u24 v18, v20, s60, v21")
            p(f"v_add_u32 v19, {8*3072}, v18")
            srd(p, SW1, 6, 512 * 3072)
            p(f"s_mov_b64 s[{SWS}:{SWS+1}], s[{P_WS}:{P_WS+1}]")
        else:
            p(f"s_waitcnt vmcnt({8 if ty == 1 else 6})")
            p("s_barrier")
    p("v_mov_b32 v27, 0")
    p(f"s_mov_b32 s3, {EPO:#x}")
    p(f"buffer_load_dword v26, v27, {W}, s3 offen sc1")
    p("s_waitcnt vmcnt(0)")
    p("s_barrier")
    p("v_add_u32 v26, 1, v26")
    p("s_setprio 3")
    p(f"v_readfirstlane_b32 s{S_NON}, v26")
    attn_setup(p)
    lds_wait(p, "YW", LDI1, f"{cnt(4):#x}", 3, 120, 4)
    flag_wait(p, "YMF", 120, 118, "0", MSL)
    kv_loads(p, 0, 8)
    p(f"ds_add_u32 v3, v2 offset:{LDI2}")
    p("s_branch GO")

    p.label("NOTLD")
    p(f"s_cmp_lt_u32 s{S_W}, 4")
    p("s_cbranch_scc1 GEMM")
    p("s_setprio 1")
    L16, R_, C_, KG, L15, A0, A1, ZR, EP = 120, 121, 122, 123, 124, 125, 126, 127, 128
    p(f"v_lshlrev_b32 v{L16}, 4, v1")
    p(f"v_bfe_u32 v{R_}, v1, 2, 2")
    p(f"v_and_b32 v{C_}, 3, v1")
    p(f"v_lshrrev_b32 v{KG}, 4, v1")
    p(f"v_and_b32 v{L15}, 15, v1")
    p(f"v_mov_b32 v{ZR}, 0")
    p(f"s_mov_b32 s{SE+3}, 0x20000")
    p(f"s_mov_b32 s3, {EPO:#x}")
    p(f"s_lshr_b32 s48, s{S_HG}, 1")
    p("s_waitcnt lgkmcnt(0)")
    p(f"s_mov_b64 s[{SWS}:{SWS+1}], s[{P_WS}:{P_WS+1}]")
    p(f"buffer_load_dword v{EP}, v{ZR}, {W}, s3 offen sc1")
    S_MD, S_TL, S_SO, S_SO_2 = 50, 51, 64, 65
    p(f"s_bitcmp1_b32 s{S_HG}, 0")
    p("s_cbranch_scc1 LAY")
    p("s_cmp_lt_u32 s48, 2")
    p(f"s_cselect_b64 s[{SE}:{SE+1}], s[14:15], s[16:17]")
    p(f"s_mov_b32 s{SE+2}, 0x4000")
    p(f"s_lshl_b32 s3, s{S_A}, 12")
    p(f"s_cmp_lt_u32 s{S_A}, 2")
    p(f"s_mov_b32 s63, {XT1 - 8192:#x}")
    p(f"s_cselect_b32 s63, {XT0:#x}, s63")
    p("s_add_u32 m0, s3, s63")
    p("s_lshr_b32 s63, s48, 1")
    for j in range(4):
        p(f"buffer_load_dwordx4 v{L16}, s[{SE}:{SE+3}], s3 offen offset:{j*1024} lds")
    srd(p, SE, P_GATE, 1024)
    p(f"s_mov_b32 m0, {GATE_L:#x}")
    p(f"s_and_b32 s{S_TL}, s48, 1")
    p(f"buffer_load_dwordx4 v{L16}, s[{SE}:{SE+3}], 0 offen lds")
    p(f"s_lshl_b32 s{S_TL}, s{S_TL}, 1")
    p(f"s_add_u32 s{S_TL}, s{S_TL}, s{S_A}")
    p(f"s_cmp_lt_u32 s{S_A}, 2")
    p(f"s_cselect_b32 s{S_MD}, s63, s{S_A}")
    p(f"s_cselect_b32 s{S_TL}, s{S_TL}, s48")
    p("v_bfe_u32 v108, v1, 1, 3")
    p(f"v_xor_b32 v108, v108, v{KG}")
    p("v_lshlrev_b32 v108, 4, v108")
    p(f"v_lshl_add_u32 v108, v{L15}, 7, v108")
    p(f"s_lshl_b32 s3, s{S_TL}, 11")
    p(f"s_add_u32 s3, s3, {XRES:#x}")
    p("v_add_u32 v108, s3, v108")
    p("v_xor_b32 v109, 64, v108")
    p(f"v_lshl_add_u32 v129, v{KG}, 3, v{R_}")
    p("v_lshlrev_b32 v129, 5, v129")
    p(f"v_lshl_add_u32 v129, v{C_}, 3, v129")
    p(f"v_lshlrev_b32 v130, 4, v{KG}")
    for j in range(4): p(f"v_mov_b32 v{104+j}, 0")
    p(f"s_lshl_b32 s3, s{S_RB}, 2")
    p(f"s_add_u32 s62, s{S_TL}, s3")
    p("s_lshr_b32 s3, s62, 1")
    p("s_lshl_b32 s3, s3, 10")
    p("s_and_b32 s63, s62, 1")
    p(f"s_add_u32 s66, s{S_MD}, 8")
    p("s_lshl_b32 s63, s63, s66")
    p("s_add_u32 s3, s3, s63")
    p(f"s_lshl_b32 s63, s{S_MD}, 16")
    assert VF == KF + 0x10000
    p("s_add_u32 s3, s3, s63")
    p(f"s_add_u32 s{S_SO}, s3, {KF:#x}")
    p("s_lshl_b32 s3, s62, 6")
    p(f"s_add_u32 s{S_SO_2}, s3, {GT:#x}")
    p(f"v_and_b32 v110, 1, v{KG}")
    p(f"v_lshrrev_b32 v111, 1, v{KG}")
    p(f"v_lshl_add_u32 v{A0}, v110, 5, v{L15}")
    p(f"v_lshlrev_b32 v{A0}, 4, v{A0}")
    p(f"v_lshl_add_u32 v{A0}, v111, 3, v{A0}")
    p(f"v_lshl_add_u32 v{A1}, v111, 4, v{L15}")
    p(f"v_lshlrev_b32 v{A1}, 4, v{A1}")
    p(f"v_lshl_add_u32 v{A1}, v110, 3, v{A1}")
    p(f"s_cmp_eq_u32 s{S_MD}, 1")
    p("s_cselect_b64 vcc, -1, 0")
    p(f"s_cselect_b32 s63, 1.0, {f2u(0.25*LOG2E):#x}")
    p(f"v_cndmask_b32 v{A0}, v{A0}, v{A1}, vcc")
    p("s_mov_b32 s66, 0")
    p("s_branch ASET")
    p.label("LAY")
    S_U, S_HP, S_SWU = 62, 63, 53
    p(f"s_mov_b32 s{S_MD}, 4")
    p(f"s_lshl_b32 s{S_U}, s{S_RB}, 2")
    p(f"s_add_u32 s{S_U}, s{S_U}, s48")
    p(f"s_cmp_lt_u32 s{S_U}, 64")
    p(f"s_cselect_b64 s[{SE}:{SE+1}], s[18:19], s[8:9]")
    p(f"s_mov_b32 s{SE+2}, 0x80000")
    p(f"s_bfe_u32 s{S_HP}, s{S_U}, 0x40002")
    p(f"s_and_b32 s{S_SWU}, s{S_U}, 3")
    p(f"s_lshl_b32 s3, s{S_HP}, 15")
    p(f"s_lshl_b32 s65, s{S_SWU}, 8")
    p("s_add_u32 s3, s3, s65")
    p(f"s_lshl_b32 s65, s{S_A}, 13")
    p("s_add_u32 s3, s3, s65")
    p(f"v_lshlrev_b32 v108, 4, v{L15}")
    p(f"v_lshl_add_u32 v108, v{KG}, 10, v108")
    p(f"s_lshl_b32 s65, s{S_A}, 11")
    p(f"s_add_u32 m0, s65, {XT0}")
    p("s_add_u32 s65, s3, 4096")
    p(f"buffer_load_dwordx4 v108, s[{SE}:{SE+3}], s3 offen lds")
    p("s_add_u32 m0, m0, 1024")
    p("v_lshlrev_b32 v109, 2, v1")
    p(f"buffer_load_dwordx4 v108, s[{SE}:{SE+3}], s65 offen lds")
    p(f"s_cmp_eq_u32 s{S_A}, 1")
    p("s_cbranch_scc0 NOMK")
    p(f"s_lshl_b32 s65, s{S_U}, 8")
    p(f"s_add_u32 s65, s65, {KVF:#x}")
    p("v_mov_b32 v110, -1")
    p(f"buffer_store_dword v110, v109, {W}, s65 offen sc1")
    p.label("NOMK")
    p(f"v_lshrrev_b32 v{A0}, 1, v{KG}")
    p(f"v_and_b32 v{A1}, 1, v{KG}")
    p(f"s_cmp_lt_u32 s{S_U}, 64")
    p("s_cbranch_scc0 TA1")
    p(f"v_lshlrev_b32 v{A0}, 4, v{A0}")
    p(f"v_lshl_add_u32 v{A0}, v{A1}, 2, v{A0}")
    p(f"v_add_u32 v{A0}, v{A0}, v{R_}")
    p(f"v_lshlrev_b32 v{A0}, 8, v{A0}")
    p(f"v_lshl_add_u32 v{A0}, v{C_}, 4, v{A0}")
    p(f"v_add_u32 v{A1}, 8, v{A0}")
    p(f"s_lshr_b32 s3, s{S_HP}, 1")
    p("s_lshl_b32 s3, s3, 2")
    p(f"s_add_u32 s3, s3, s{S_SWU}")
    p("s_lshl_b32 s3, s3, 14")
    p(f"s_and_b32 s65, s{S_HP}, 1")
    p("s_lshl_b32 s65, s65, 10")
    p("s_add_u32 s3, s3, s65")
    p(f"s_lshl_b32 s65, s{S_A}, 12")
    p("s_add_u32 s3, s3, s65")
    p(f"s_add_u32 s{S_SO}, s3, {WBF:#x}")
    p(f"s_add_u32 s{S_SO_2}, s{S_SO}, 2048")
    p("s_branch TA2")
    p.label("TA1")
    p(f"v_lshl_add_u32 v{A0}, v{A0}, 2, v{R_}")
    p(f"v_lshlrev_b32 v{A0}, 8, v{A0}")
    p(f"v_lshl_add_u32 v{A0}, v{A1}, 5, v{A0}")
    p(f"v_lshl_add_u32 v{A0}, v{C_}, 3, v{A0}")
    p(f"v_add_u32 v{A1}, 4096, v{A0}")
    p(f"s_lshl_b32 s3, s{S_SWU}, 17")
    p(f"s_lshl_b32 s65, s{S_HP}, 11")
    p("s_add_u32 s3, s3, s65")
    p(f"s_lshl_b32 s65, s{S_A}, 15")
    p("s_add_u32 s3, s3, s65")
    p(f"s_add_u32 s{S_SO}, s3, {WAF:#x}")
    p(f"s_add_u32 s{S_SO_2}, s{S_SO}, 1024")
    p.label("TA2")
    p(f"s_lshl_b32 s3, s{S_A}, 6")
    p(f"v_add_u32 v{A0}, s3, v{A0}")
    p(f"v_add_u32 v{A1}, s3, v{A1}")
    p(f"s_lshr_b32 s66, s{S_U}, 3")
    p("s_lshl_b32 s66, s66, 7")
    p(f"s_and_b32 s3, s{S_U}, 7")
    p("s_lshl_b32 s3, s3, 2")
    p("s_add_u32 s66, s66, s3")
    p(f"s_add_u32 s66, s66, {TF:#x}")
    p(f"s_cmp_eq_u32 s{S_A}, 0")
    p("s_cselect_b32 s66, s66, 0")
    p.label("ASET")
    attn_setup(p)
    p(f"s_mov_b32 s{S_N}, 0")
    p("s_waitcnt vmcnt(0)")
    p(f"v_add_u32 v{EP}, 1, v{EP}")
    p("s_nop 0")
    p(f"v_readfirstlane_b32 s{S_NON}, v{EP}")
    p.label("AUXL")
    for hs in range(2):
        p(f"s_lshl_b32 s3, s{S_KS}, 11")
        p(f"s_add_u32 s62, s3, {XT0:#x}")
        p(f"s_add_u32 s3, s3, {XT1 - 8192:#x}")
        p(f"s_cmp_lt_u32 s{S_KS}, 4")
        p("s_cselect_b32 s3, s62, s3")
        p(f"v_add_u32 v{131+hs}, s3, v129")
        p(f"s_lshl_b32 s3, s{S_KS}, 7")
        p(f"v_add_u32 v{133+hs}, s3, v130")
        p(f"s_add_u32 s{S_KS}, s{S_KS}, 1")
        p(f"s_and_b32 s{S_KS}, s{S_KS}, 7")
    p(f"s_add_u32 s{S_N}, s{S_N}, 1")
    p("s_barrier")
    if P2E:
        p(f"s_sub_u32 s3, s{S_N}, 2")
        p(f"s_cmp_lt_u32 s3, {P2E}")
        p("s_cbranch_scc0 AUXE")
        p("s_barrier")
        p.label("AUXE")
    p(f"s_cmp_ge_u32 s{S_MD}, 3")
    p("s_cbranch_scc1 AUXC")
    for i in range(4): p(f"ds_read_b128 v[{8+4*i}:{11+4*i}], v{108+(i&1)} offset:{(i>>1)*8192}")
    p(f"s_cmp_eq_u32 s{S_MD}, 2")
    p("s_cbranch_scc1 AUXR")
    for i in range(4):
        p(f"ds_read_b64_tr_b16 v[{24+4*i}:{25+4*i}], v{131+(i>>1)} offset:{(i&1)*1024}")
        p(f"ds_read_b64_tr_b16 v[{26+4*i}:{27+4*i}], v{131+(i>>1)} offset:{(i&1)*1024+128}")
    p("s_branch AUXM")
    p.label("AUXR")
    for i in range(4): p(f"ds_read_b128 v[{24+4*i}:{27+4*i}], v{133+(i>>1)} offset:{GATE_L + (i&1)*64}")
    p.label("AUXM")
    p("v_add_u32 v108, 0x4000, v108")
    p("v_add_u32 v109, 0x4000, v109")
    p("s_waitcnt lgkmcnt(0)")
    p(f"s_cmp_eq_u32 s{S_MD}, 1")
    p("s_cbranch_scc1 AUXB")
    for i in range(4):
        p(f"v_mfma_f32_16x16x32_bf16 v[104:107], v[{24+4*i}:{27+4*i}], v[{8+4*i}:{11+4*i}], v[104:107]")
    p("s_branch AUXC")
    p.label("AUXB")
    for i in range(4):
        p(f"v_mfma_f32_16x16x32_bf16 v[104:107], v[{8+4*i}:{11+4*i}], v[{24+4*i}:{27+4*i}], v[104:107]")
    p.label("AUXC")
    p(f"s_cmp_lt_u32 s{S_N}, 4")
    p("s_cbranch_scc1 AUXL")
    if STB: p("s_barrier")
    p.pad(6)
    p(f"s_cmp_lt_u32 s{S_MD}, 2")
    p("s_cbranch_scc1 AUXK")
    p(f"s_cmp_eq_u32 s{S_MD}, 3")
    p("s_cbranch_scc1 AUXD")
    p(f"s_cmp_eq_u32 s{S_MD}, 4")
    p("s_cbranch_scc1 AUXT")
    p(f"v_mul_f32 v104, {f2u(-LOG2E):#x}, v104")
    p("v_exp_f32 v104, v104")
    p("v_add_f32 v104, 1.0, v104")
    p("v_rcp_f32 v104, v104")
    p("s_mov_b64 exec, 0xffff")
    p(f"buffer_store_dword v104, v3, {W}, s{S_SO_2} offen sc1")
    p("s_mov_b64 exec, -1")
    p("s_branch AUXD")
    p.label("AUXK")
    for j in range(4): p(f"v_mul_f32 v{104+j}, s63, v{104+j}")
    for j in range(2): p(f"v_cvt_pk_bf16_f32 v{110+j}, v{104+2*j}, v{105+2*j}")
    p(f"buffer_store_dwordx2 v[110:111], v{A0}, {W}, s{S_SO} offen sc1")
    p("s_branch AUXD")
    p.label("AUXT")
    for k, a in enumerate((A0, A1)):
        p(f"ds_read_b64_tr_b16 v[{104+4*k}:{105+4*k}], v{a} offset:{XT0}")
        p(f"ds_read_b64_tr_b16 v[{106+4*k}:{107+4*k}], v{a} offset:{XT0 + 2048}")
    p("s_waitcnt lgkmcnt(0)")
    p(f"buffer_store_dwordx4 v[104:107], v0, {W}, s{S_SO} offen sc1")
    p(f"buffer_store_dwordx4 v[108:111], v0, {W}, s{S_SO_2} offen sc1")
    p.label("AUXD")
    p.stamp(8)
    for n in range(4 + P2E + STB, POLB + 1):
        if n == EFB: p("s_waitcnt vmcnt(0)")
        p("s_barrier")
        if n == EFB:
            p("s_cmp_eq_u32 s66, 0")
            p("s_cbranch_scc1 NOTF")
            p("s_mov_b64 exec, 1")
            p(f"buffer_store_dword v{EP}, v{ZR}, {W}, s66 offen sc1")
            p("s_mov_b64 exec, -1")
            p.label("NOTF")
    p("s_setprio 3")
    p.stamp(2)
    if DIAGP: p("s_mov_b32 s69, 0")
    if POLB < 11:
        p(f"buffer_load_dword v120, v118, {W}, 0 offen {PM}")
        for n in range(POLB + 1, 11): p("s_barrier")
        p("s_waitcnt vmcnt(0)")
        p(f"v_cmp_ne_u32 vcc, s{S_NON}, v120")
        p("s_cbranch_vccnz OLATE")
        p.stamp(7)
        kv_loads(p, 0, NEARLY)
        p("s_barrier")
        p("s_branch OREST")
        p.label("OLATE")
        p("s_barrier")
        p("s_mov_b64 exec, vcc")
    flag_wait(p, "OMF", 120, 118, "0", MSL)
    p.stamp(7)
    kv_loads(p, 0, NEARLY)
    p.label("OREST")
    kv_loads(p, NEARLY, 8)
    p(f"ds_add_u32 v3, v2 offset:{LDI1}")
    p(f"s_lshl_b32 s3, s{S_A}, 13")
    p(f"s_add_u32 s3, s3, s{S_QO}")
    p(f"s_lshl_b32 s10, s{S_A}, 11")
    p(f"s_add_u32 m0, s10, {QL}")
    p("s_add_u32 s11, s3, 4096")
    p(f"buffer_load_dwordx4 v112, {W}, s3 offen sc1 lds")
    p("s_add_u32 m0, m0, 1024")
    p("s_nop 0")
    p(f"buffer_load_dwordx4 v112, {W}, s11 offen sc1 lds")
    p(f"s_lshl_b32 m0, s{S_A}, 8")
    p.label("GO")
    p(f"v_add_u32 v0, {QL}, v0")
    p.stamp(9)
    p("s_waitcnt vmcnt(23)")
    p(f"v_mfma_f32_32x32x16_bf16 v[{S0}:{S0+15}], {Kf(0)}, v[{Q}:{Q+3}], 0")
    p.stamp(3)
    attn_main(p, ladder)
    ob = Or(7)
    p(f"v_smfmac_f32_32x32x32_bf16 v[{ob}:{ob+15}], {Vf(7,1)}, v[{Sr(1)+8}:{Sr(1)+15}], v2")
    for l in drain(ob, 7, False): p(l)
    p("s_waitcnt lgkmcnt(0)")
    p.stamp(4)
    p("s_barrier")
    p.stamp(5, True)
    p("s_barrier")
    p(f"ds_read_b32 v4, v3 offset:{REDO}")
    p("s_waitcnt lgkmcnt(0)")
    p("v_cmp_ne_u32 vcc, 0, v4")
    p("s_cbranch_vccnz SLOWA")
    if DIAGP: p("s_waitcnt lgkmcnt(0)"); p("s_add_u32 s82, s72, s69")
    p.dump_stamps(10, SWS, 2, S_W, STAMP2, (4, 5))
    p("s_endpgm")
    p.label("BP")
    j = Or(0) + 10
    p(f"ds_read2st64_b32 v[{j}:{j+1}], v3 offset0:{FF//256} offset1:{FF//256 + 1}")
    p("s_waitcnt lgkmcnt(0)")
    p(f"v_and_b32 v{j}, v{j}, v{j+1}")
    p(f"v_cmp_ne_u32 vcc, 1, v{j}")
    p("s_cbranch_vccz BPRET")
    spin(p, "BP", 4)
    p.label("QW")
    j = Or(1) + 10
    p(f"s_cmp_lt_u32 s{S_A}, 4")
    p("s_cbranch_scc0 QW2")
    p("s_waitcnt vmcnt(0)")
    p(f"ds_add_u32 v3, v2 offset:{QRDY}")
    p.label("QW2")
    p(f"ds_read_b32 v{j}, v3 offset:{QRDY}")
    p(f"ds_read_b128 v[{Q}:{Q+3}], v0 offset:1024")
    p("s_waitcnt lgkmcnt(1)")
    p(f"v_cmp_ne_u32 vcc, {cnt(4) + 4:#x}, v{j}")
    p("s_cbranch_vccz QWRET")
    spin(p, "QW2", 1)

    p.label("GEMM")
    p("v_lshlrev_b32 v28, 4, v0")
    for r in range(4): p(f"v_mov_b32 v{32+r}, 0")
    p(f"ds_write_b128 v28, v[32:35] offset:{CNT}")
    p(f"ds_write_b128 v28, v[32:35] offset:{ZEND - 4096}")
    p("v_lshlrev_b32 v24, 2, v1")
    p("v_mov_b32 v25, 0")
    p("s_lshl_b32 s3, s3, 6")
    p("v_add_u32 v22, s3, v1")
    p("s_movk_i32 s60, 3072")
    p("v_mul_u32_u24 v22, s60, v22")
    p(f"s_lshl_b32 s62, s{S_HG}, 7")
    p(f"s_lshl_b32 s63, s{S_W}, 10")
    p("s_add_u32 s62, s62, s63")
    p("s_waitcnt lgkmcnt(0)")
    p(f"s_mov_b64 s[{SWS}:{SWS+1}], s[{P_WS}:{P_WS+1}]")
    p(f"s_mov_b32 s3, {EPO:#x}")
    p(f"buffer_load_dword v25, v25, {W}, s3 offen sc1")
    srd(p, SW1, 6, 512 * 3072)
    p(f"s_cmp_eq_u32 s{S_W}, 3")
    p("s_cbranch_scc1 NOTCH")
    if TOUCH: p(f"buffer_load_dword v132, v22, s[{SW1}:{SW1+3}], s62 offen")
    p.label("NOTCH")
    p("s_getpc_b64 s[62:63]")
    p.label("PC0")
    p(f"s_sub_u32 s62, s62, PC0-{name}")
    p("s_subb_u32 s63, s63, 0")
    p("s_bfe_u32 s3, s2, 0x30003")
    p("s_lshl_b32 s3, s3, 12")
    p("v_add_u32 v22, s3, v28")
    p("global_load_dwordx4 v[128:131], v22, s[62:63]")
    p("v_and_b32 v20, 31, v1")
    p("v_lshrrev_b32 v21, 5, v1")
    p("v_bfe_u32 v22, v1, 1, 3")
    p("v_xor_b32 v22, v22, v21")
    p("v_lshlrev_b32 v22, 4, v22")
    p("v_lshl_add_u32 v22, v20, 7, v22")
    p(f"s_lshr_b32 s3, s{S_W}, 1")
    p("s_lshl_b32 s3, s3, 12")
    p(f"s_add_u32 s3, s3, {XRES:#x}")
    p("v_add_u32 v2, s3, v22")
    for t in range(1, 4): p(f"v_xor_b32 v{2+t}, {t*32}, v2")
    p("v_bfe_u32 v22, v1, 2, 2")
    p("v_lshl_add_u32 v23, v21, 3, v22")
    p("v_lshlrev_b32 v23, 7, v23")
    p("v_bfe_u32 v26, v1, 4, 1")
    p("v_lshlrev_b32 v26, 1, v26")
    p("v_bfe_u32 v27, v1, 1, 1")
    p("v_or_b32 v26, v26, v27")
    p(f"s_and_b32 s3, s{S_W}, 1")
    p("s_lshl_b32 s3, s3, 2")
    p("v_or_b32 v26, s3, v26")
    p("v_bfe_u32 v27, v1, 3, 1")
    p("v_lshlrev_b32 v27, 2, v27")
    p("v_xor_b32 v26, v26, v27")
    p("v_lshl_add_u32 v23, v26, 4, v23")
    p("v_and_b32 v27, 1, v1")
    p("v_lshl_add_u32 v10, v27, 3, v23")
    p(f"v_add_u32 v11, {WSL[2]:#x}, v10")
    p(f"s_mov_b32 s{S_L2E}, {f2u(LOG2E):#x}")
    p(f"s_mov_b32 s{S_L2E+1}, {f2u(LOG2E):#x}")
    p(f"s_mov_b32 s{S_EPS}, {f2u(1e-6):#x}")
    p(f"s_mov_b32 s{S_EPS+1}, {f2u(1e-6):#x}")
    p(f"s_lshl_b32 s3, s{S_RB}, 1")
    p(f"s_lshr_b32 s62, s{S_W}, 1")
    p("s_add_u32 s3, s3, s62")
    p("s_lshl_b32 s3, s3, 5")
    p(f"s_lshl_b32 s62, s{S_HG}, 2")
    p("s_add_u32 s3, s3, s62")
    p(f"s_and_b32 s62, s{S_W}, 1")
    p("s_lshl_b32 s62, s62, 1")
    p("s_add_u32 s3, s3, s62")
    p("s_lshl_b32 s3, s3, 10")
    p("v_lshl_add_u32 v26, v1, 4, s3")
    p(f"s_mov_b32 s63, {PQF:#x}")
    p(f"s_mul_i32 s64, s{S_RB}, {KVN*4}")
    p(f"s_lshl_b32 s3, s{S_HG}, 1")
    p(f"s_and_b32 s62, s{S_W}, 1")
    p("s_add_u32 s3, s3, s62")
    p("s_mul_i32 s3, s3, 2176")
    p("s_add_u32 s64, s64, s3")
    p(f"s_add_u32 s64, s64, {KVP:#x}")
    p(f"s_lshl_b32 s65, s{S_RB}, 10")
    p(f"s_lshl_b32 s3, s{S_HG}, 7")
    p("s_add_u32 s65, s65, s3")
    p(f"s_add_u32 s65, s65, {EF:#x}")
    p(f"s_lshl_b32 s66, s{S_HG}, 12")
    p(f"s_lshl_b32 s3, s{S_RB}, 7")
    p("s_add_u32 s66, s66, s3")
    p(f"s_add_u32 s66, s66, {GA:#x}")
    p(f"s_cmp_eq_u32 s{S_W}, 0")
    p("s_cselect_b32 s50, -1, 0")
    p("s_mov_b32 s51, 0")
    for j in range(4): p(f"v_mov_b32 v{28+j}, 0x3f803f80")
    p("v_mov_b32 v23, 1")
    p("v_lshlrev_b32 v27, 4, v1")
    p("s_lshl_b32 s3, s62, 12")
    p("v_add_u32 v12, s3, v27")
    p("s_lshl_b32 s3, s62, 7")
    p("v_lshl_add_u32 v13, v20, 2, s3")
    p("v_lshl_add_u32 v14, v21, 2, v20")
    p("v_lshlrev_b32 v14, 4, v14")
    assert QF == 0
    QP = 136
    N1 = 4 + P2E
    P = pack(QB, QP)
    hooks = {(N1, 2): P[:4] + [f"buffer_store_dwordx4 v[{QP}:{QP+3}], v26, {W}, 0 offen sc1"],
             (N1, 3): P[4:] + [f"buffer_store_dwordx4 v[{QP+4}:{QP+7}], v26, {W}, 0 offen offset:1024 sc1"],
             ('B', 1): ["s_waitcnt vmcnt(0)", "v_add_u32 v25, 1, v25"],
             ('B', EFB): ["s_waitcnt vmcnt(0)"],
             ('A', EFB): [f"s_cmp_eq_u32 s{S_W}, 0", "s_cbranch_scc0 NOEF", "s_mov_b32 exec_hi, 0",
                          f"buffer_store_dword v25, v24, {W}, s65 offen sc1", "s_mov_b64 exec, -1", "NOEF:"],
             ('A', 10): ["s_setprio 3"]}
    gemm(p, hooks)
    p(f"v_readfirstlane_b32 s{S_NON}, v25")
    p(f"ds_add_u32 v24, v23 offset:{QRDY}")
    def publish(row, sflag, lab, vm):
        p(f"s_waitcnt vmcnt({vm})")
        p(f"ds_add_rtn_u32 v22, v24, v23 offset:{row}")
        p("s_waitcnt lgkmcnt(0)")
        p("v_cmp_ne_u32 vcc, 3, v22")
        p(f"s_cbranch_vccnz {lab}")
        flag_store(p, 25, 24, sflag)
        p.label(lab)
    KVA, ZA = 136, 152
    phi_half(p, KA, 32, 128)
    for l in pack(VA, 40): p(l)
    phi_half(p, KA + 8, 36, 128)
    p(f"s_cmp_lt_u32 s{S_W}, 2")
    p("s_cbranch_scc1 KV0")
    for i in range(4): p(f"ds_write_b128 v12, v[{32+4*i}:{35+4*i}] offset:{XT0 + i*1024}")
    p(f"ds_write_b32 v13, v23 offset:{XCH}")
    p.label("KV0")
    def kvm(i):
        b = 32 + (i >> 1) * 16 + (i & 1) * 4
        A = f"v[{b}:{b+3}]"; B = f"v[{b+8}:{b+11}]"
        c1 = "0" if i == 0 else f"v[{KVA}:{KVA+15}]"; c2 = "0" if i == 0 else f"v[{ZA}:{ZA+15}]"
        return [f"v_mfma_f32_32x32x16_bf16 v[{KVA}:{KVA+15}], {A}, {B}, {c1}",
                f"v_mfma_f32_32x32x16_bf16 v[{ZA}:{ZA+15}], {A}, v[28:31], {c2}"]
    phi_half(p, QA, 64, 128)
    p(f"buffer_store_dwordx4 v[64:67], v26, {W}, s63 offen sc1")
    phi_half(p, QA + 8, 68, 128)
    p(f"buffer_store_dwordx4 v[68:71], v26, {W}, s63 offen offset:1024 sc1")
    p.stamp(2)
    p(f"s_cmp_lt_u32 s{S_W}, 2")
    p("s_cbranch_scc0 SIDE")
    for i in range(2):
        for l in kvm(i): p(l)
    lds_wait(p, "XW", XCH, 1, 13, 22, 1)
    for i in range(4): p(f"ds_read_b128 v[{48+4*i}:{51+4*i}], v12 offset:{XT0 + i*1024}")
    p("s_waitcnt lgkmcnt(0)")
    for i in range(2, 4):
        for l in kvm(i): p(l)
    p("s_mov_b32 exec_lo, 0xffff0000")
    p("s_mov_b32 exec_hi, 0xffff0000")
    for j in range(4): p(f"v_pk_mov_b32 v[{KVA+2*j}:{KVA+2*j+1}], v[{KVA+8+2*j}:{KVA+9+2*j}], v[{KVA+8+2*j}:{KVA+9+2*j}] op_sel:[0,1]")
    p("s_mov_b64 exec, -1")
    for q in range(2):
        p(f"buffer_store_dwordx4 v[{KVA+4*q}:{KVA+4*q+3}], v27, {W}, s64 offen offset:{q*1024} sc1")
    for n in range(1, 4):
        p(f"s_mov_b32 exec_lo, {1 << n}")
        p(f"s_mov_b32 exec_hi, {1 << n}")
        for j in range(2): p(f"v_pk_mov_b32 v[{ZA+2*j}:{ZA+2*j+1}], v[{ZA+4*n+2*j}:{ZA+4*n+2*j+1}], v[{ZA+4*n+2*j}:{ZA+4*n+2*j+1}] op_sel:[0,1]")
    p("s_mov_b32 exec_lo, 15")
    p("s_mov_b32 exec_hi, 15")
    p(f"buffer_store_dwordx4 v[{ZA}:{ZA+3}], v14, {W}, s64 offen offset:2048 sc1")
    p("s_mov_b64 exec, -1")

    p.label("SIDE")
    if STG: p.mute = set(range(5, 12))
    p.stamp(5)
    T = 8; ST = 72; ACC = 136
    S_SW = S_W
    logical_id(p)
    publish(GCNT, 66, "NOGF", 0)
    p.stamp(6)
    p("v_lshlrev_b32 v4, 2, v1")
    p("v_mov_b32 v6, 1")
    p("v_lshlrev_b32 v0, 4, v1")
    p("v_and_b32 v2, 7, v1")
    p("v_lshlrev_b32 v2, 2, v2")
    p("v_and_b32 v3, 31, v1")
    p("v_lshlrev_b32 v3, 2, v3")
    srd(p, SOUT, P_OUT, 2048 * 1024)
    p(f"s_mov_b32 s{S_B}, 0")
    p(f"s_mov_b32 s{S_MODE}, 0")
    p(f"s_mov_b64 s[{S_BAD}:{S_BAD+1}], 0")
    p(f"s_lshr_b32 s13, s{S_L}, 3")
    p("s_lshl_b32 s13, s13, 7")
    p("v_lshrrev_b32 v7, 2, v1")
    p("v_lshlrev_b32 v7, 7, v7")
    p(f"v_and_b32 v{T}, 3, v1")
    p(f"v_lshl_add_u32 v7, v{T}, 3, v7")
    p(f"s_mov_b32 s11, {TF:#x}")
    p.label("TFW")
    p(f"buffer_load_dwordx2 v[{T}:{T+1}], v7, {W}, s11 offen sc1")
    p("s_waitcnt vmcnt(0)")
    for j in range(2): p(f"v_xor_b32 v{T+j}, s{S_NON}, v{T+j}")
    p(f"v_or_b32 v{T}, v{T}, v{T+1}")
    p(f"v_cmp_ne_u32 vcc, 0, v{T}")
    p("s_cbranch_vccz TFG")
    spin(p, "TFW", 8)
    p.label("TFG")
    p.stamp(8)
    p("s_cmp_lt_u32 s2, 68")
    p("s_cbranch_scc0 NORED")
    p(f"s_cmp_eq_u32 s{S_SW}, 1")
    p("s_cbranch_scc0 NORED")
    p("s_mul_i32 s3, s2, 7711")
    p("s_lshr_b32 s3, s3, 16")
    p("s_min_u32 s3, s3, 6")
    p("s_lshl_b32 s3, s3, 12")
    p(f"s_add_u32 s11, s3, {GA:#x}")
    p("v_lshlrev_b32 v7, 7, v1")
    if RGATE >= 0: lds_wait(p, "RG", CNT + RGATE * 256, f"{cnt(4):#x}", 4, T, 4, op="gt")
    flag_wait(p, "RKW", T, 7, "s11", 4)
    p("v_lshlrev_b32 v7, 3, v1")
    p("s_lshl_b32 s12, s2, 9")
    p(f"s_add_u32 s12, s12, {KVP:#x}")
    for i in range(32):
        p(f"buffer_load_dwordx2 v[{ST+2*i}:{ST+2*i+1}], v7, {W}, s12 offen sc1")
        if i < 31: p(f"s_add_u32 s12, s12, {KVN*4}")
    p("s_waitcnt vmcnt(0)")
    n = 32
    while n > 1:
        n //= 2
        for i in range(n):
            a, b = (2 * i, 2 * i + 1)
            p(f"v_pk_add_f32 v[{ST+2*i}:{ST+2*i+1}], v[{ST+2*a}:{ST+2*a+1}], v[{ST+2*b}:{ST+2*b+1}]")
    p(f"v_cvt_pk_bf16_f32 v{ST}, v{ST}, v{ST+1}")
    p("s_lshl_b32 s12, s2, 8")
    p(f"s_add_u32 s12, s12, {KVF:#x}")
    p(f"buffer_store_dword v{ST}, v4, {W}, s12 offen sc1")
    p.label("NORED")
    p(f"s_lshl_b32 s10, s{S_L}, 5")
    p(f"s_add_u32 s10, s10, {GT:#x}")
    p(f"s_lshl_b32 s11, s{S_RT}, 7")
    p(f"s_add_u32 s11, s11, {GT:#x}")
    p(f"s_lshl_b32 s3, s{S_RT}, 15")
    p(f"s_lshl_b32 s12, s{S_SW}, 13")
    p("s_add_u32 s3, s3, s12")
    p(f"s_add_u32 s3, s3, {PQF:#x}")
    p.dry_run("TL", "TL_RET")
    p.label("POLLST")
    p(f"ds_read_b32 v{T}, v4 offset:{LDI2}")
    p("s_waitcnt lgkmcnt(0)")
    p(f"v_cmp_ne_u32 vcc, {cnt(4):#x}, v{T}")
    p("s_cbranch_vccz START")
    spin(p, "POLLST", 4)
    p.label("START")
    p.stamp(7)
    p("s_mov_b32 s15, s11")
    p("s_mov_b32 s14, s3")
    def wld(dst, i): return f"buffer_load_dwordx4 v[{dst+4*i}:{dst+4*i+3}], v0, {W}, s3 offen offset:{(i&3)*1024} sc1"
    def load16(sreg, dst):
        p(f"s_mov_b32 s3, s{sreg}")
        for i in range(16):
            p(wld(dst, i))
            if i & 3 == 3 and i < 15: p("s_add_u32 s3, s3, 4096")
    p(f"s_lshl_b32 s{S_WA}, s{S_SUB}, 2")
    p(f"s_add_u32 s{S_WA}, s{S_WA}, s{S_SW}")
    p(f"s_lshl_b32 s{S_WA}, s{S_WA}, 15")
    p(f"s_add_u32 s{S_WA}, s{S_WA}, {WAF:#x}")
    load16(S_WA, ST)
    p(f"s_add_u32 s{S_WA}, s{S_WA}, 0x4000")
    p(f"s_add_u32 s11, s13, {GA:#x}")
    p("v_lshl_add_u32 v7, v2, 10, s11")
    flag_wait(p, "PPW", T, 7, "0", 8)
    p(f"buffer_load_dword v5, v2, {W}, s10 offen sc1")
    p(f"buffer_load_dword v6, v3, {W}, s15 offen sc1")
    for i in range(8):
        p(f"buffer_load_dwordx4 v[{T+32+4*i}:{T+32+4*i+3}], v0, {W}, s14 offen offset:{(i&3)*1024} sc1")
        if i == 3: p("s_add_u32 s14, s14, 4096")
    p(f"v_lshrrev_b32 v{T}, 5, v1")
    p(f"v_and_b32 v{T+1}, 15, v1")
    p(f"v_lshl_add_u32 v{T+1}, v{T}, 5, v{T+1}")
    p(f"v_lshlrev_b32 v{T+1}, 3, v{T+1}")
    p(f"v_lshlrev_b32 v{T}, 5, v{T}")
    p(f"v_add_u32 v{T}, 1024, v{T}")
    p("v_cmp_lt_u32 vcc, 60, v3")
    for e in range(2):
        for q in range(2):
            p(f"v_add_u32 v{T+2}, {e*128 + q*512}, v{T+1}")
            p(f"v_add_u32 v{T+3}, {e*16 + q*8}, v{T}")
            p(f"v_cndmask_b32 v{ACC+4+2*e+q}, v{T+2}, v{T+3}, vcc")
    p(f"s_mul_i32 s12, s{S_SW}, {4*1088}")
    p(f"s_add_u32 s12, s12, {KVF:#x}")
    if KGATE >= 0: lds_wait(p, "KG", CNT + KGATE * 256, f"{cnt(4):#x}", 4, T, 4, op="gt")
    p(f"s_mov_b32 s{S_SP}, 0")
    p.label("POLLKV")
    for i in range(8):
        for q in range(2):
            p(f"buffer_load_dwordx2 v[{T+4*i+2*q}:{T+4*i+2*q+1}], v{ACC+4+2*(i&1)+q}, {W}, s12 offen offset:{(i>>1)*1088} sc1")
    p("s_waitcnt vmcnt(0)")
    p(f"v_max3_u32 v{ACC}, v{T}, v{T+1}, v{T+2}")
    for i in range(3, 31, 2): p(f"v_max3_u32 v{ACC}, v{ACC}, v{T+i}, v{T+i+1}")
    p(f"v_max_u32 v{ACC}, v{ACC}, v{T+31}")
    p(f"v_cmp_eq_u32 vcc, -1, v{ACC}")
    p("s_cbranch_vccz GOTKV")
    p(f"s_add_u32 s{S_SP}, s{S_SP}, 1")
    p(f"s_cmp_gt_u32 s{S_SP}, 0x8000")
    p("s_cbranch_scc1 GOTKV")
    p("s_sleep 8")
    p("s_branch POLLKV")
    p.label("GOTKV")
    p.stamp(9)
    p(f"s_lshl_b32 s3, s{S_SW}, 13")
    p(f"s_add_u32 s3, s3, {OAF}")
    p("v_add_u32 v7, s3, v0")
    p(f"s_mov_b32 s11, {f2u(1e-6):#x}")
    p("v_sub_f32 v5, 1.0, v5")
    def oa_mfma(i):
        o = ACC + 16 * (i & 1)
        p(f"v_mfma_f32_32x32x16_bf16 v[{o}:{o+15}], v[{T+4*i}:{T+4*i+3}], v[{T+32+4*i}:{T+32+4*i+3}], 0")
    oa_mfma(0)
    for i in range(8):
        if i < 7: oa_mfma(i + 1)
        o = ACC + 16 * (i & 1)
        p(f"v_add_f32 v{o+8}, s11, v{o+8}")
        p(f"v_rcp_f32 v{o+8}, v{o+8}")
        p(f"v_mul_f32 v{o+8}, v6, v{o+8}")
        for j in range(8): p(f"v_mul_f32 v{o+j}, v{o+8}, v{o+j}")
        for j in range(4): p(f"v_cvt_pk_bf16_f32 v{o+12+j}, v{o+2*j}, v{o+2*j+1}")
        p(f"ds_write_b128 v7, v[{o+12}:{o+15}] offset:{i*1024}")
    p("v_mov_b32 v6, 1")
    p(f"ds_add_u32 v4, v6 offset:{OACNT}")
    load16(S_WA, T)
    p.label("POLLOA")
    p(f"ds_read_b32 v7, v4 offset:{OACNT}")
    p("s_waitcnt lgkmcnt(0)")
    p(f"v_cmp_ne_u32 vcc, 4, v7")
    p("s_cbranch_vccz GOTOA")
    spin(p, "POLLOA", 2)
    p.label("GOTOA")
    B = ACC + 16
    p(f"s_lshl_b32 s{S_WB}, s{S_SW}, 14")
    p(f"s_add_u32 s{S_WB}, s{S_WB}, {WBF:#x}")
    p(f"s_mov_b32 s3, s{S_WB}")
    p(f"s_add_u32 s{S_WB}, s{S_WB}, 0x10000")
    order = [(i >> 1) + 16 * (i & 1) for i in range(32)]
    def brd(k): p(f"ds_read_b128 v[{B+4*(k&3)}:{B+4*(k&3)+3}], v0 offset:{OAF + order[k]*1024}")
    brd(0); brd(1)
    p("s_waitcnt vmcnt(0)")
    for k in range(32):
        hd = order[k]; src = (ST if hd < 16 else T) + 4 * (hd & 15)
        if k + 2 < 32: brd(k + 2)
        p(f"s_waitcnt lgkmcnt({min(2, 31-k)})")
        C = "0" if k == 0 else f"v[{ACC}:{ACC+15}]"
        p(f"v_mfma_f32_32x32x16_bf16 v[{ACC}:{ACC+15}], v[{src}:{src+3}], v[{B+4*(k&3)}:{B+4*(k&3)+3}], {C}")
        if hd < 16:
            p(wld(ST, hd))
            if hd & 3 == 3 and hd < 15: p("s_add_u32 s3, s3, 4096")
    p(f"s_lshl_b32 s3, s{S_L}, 2")
    p(f"s_add_u32 s3, s3, s{S_SW}")
    p("s_lshl_b32 s10, s3, 12")
    p(f"s_add_u32 s10, s10, {OUTA:#x}")
    for q in range(4):
        p(f"buffer_store_dwordx4 v[{ACC+4*q}:{ACC+4*q+3}], v0, {W}, s10 offen offset:{q*1024} sc1")
    p("s_lshl_b32 s3, s3, 7")
    p(f"s_add_u32 s3, s3, {FA:#x}")
    p(f"v_mov_b32 v{T+1}, s{S_NON}")
    p("v_mov_b32 v7, 0")
    p("v_lshrrev_b32 v3, 5, v1")
    p("v_lshlrev_b32 v3, 7, v3")
    p("v_lshl_add_u32 v3, v2, 2, v3")
    p(f"v_bfe_u32 v{T}, v1, 4, 1")
    p(f"v_lshl_add_u32 v3, v{T}, 9, v3")
    p(f"v_add_u32 v3, {QL}, v3")
    MSK = f"s[{S_MSK}:{S_MSK+1}]"
    p(f"s_mov_b32 s{S_MSK}, 0x00ff00ff")
    p(f"s_mov_b32 s{S_MSK+1}, 0x00ff00ff")
    p(f"s_not_b64 exec, {MSK}")
    p(f"v_mov_b32 v3, {ZERO}")
    p("s_mov_b64 exec, -1")
    p(f"s_mov_b32 s{S_C8}, {cnt(8):#x}")
    p(f"s_mov_b32 s{S_DU}, s{S_SW}")
    p(f"s_mov_b32 s{S_LO}, {(127-80) << 23:#x}")
    p(f"s_mov_b32 s{S_RNG}, {180 << 23:#x}")
    p("s_waitcnt vmcnt(0)")
    flag_store(p, T + 1, 4, 3)
    p(f"s_mov_b32 s{S_AF}, 0")
    for r in range(16): p(f"v_pk_mov_b32 v[{ACC+2*r}:{ACC+2*r+1}], 0, 0")
    p(f"s_lshl_b32 s14, s{S_RT}, 2")
    p(f"s_add_u32 s14, s14, s{S_SW}")
    p("s_lshl_b32 s15, s14, 14")
    p(f"s_lshl_b32 s10, s{S_SUB}, 7")
    p("s_add_u32 s15, s15, s10")
    p(f"s_add_u32 s15, s15, {OUTA:#x}")
    p("s_lshl_b32 s14, s14, 9")
    p(f"s_add_u32 s14, s14, {FA:#x}")
    p(f"s_lshl_b32 s3, s2, 2")
    p(f"s_add_u32 s3, s3, s{S_SW}")
    p("s_cmp_eq_u32 s3, 3")
    p("s_cbranch_scc0 NOEP")
    p(f"v_mov_b32 v{T}, s{S_NON}")
    p(f"s_mov_b32 s12, {EPO:#x}")
    p("s_mov_b64 exec, 1")
    p(f"buffer_store_dword v{T}, v7, {W}, s12 offen sc1")
    p("s_mov_b64 exec, -1")
    p.label("NOEP")
    p.stamp(10)
    if 'blk' in exp: p.stamp(2)

    p.label("BLK")
    p(f"s_lshl_b32 m0, s{S_DU}, 8")
    p(f"ds_read_b32 v{T+1}, v4 offset:{FF}")
    p(f"ds_read_addtid_b32 v{T} offset:{CNT}")
    p("s_waitcnt lgkmcnt(0)")
    p(f"v_cmp_ne_u32 vcc, s{S_C8}, v{T}")
    p("s_cbranch_vccz DUTY")
    p(f"v_cmp_ne_u32 vcc, 1, v{T+1}")
    p("s_cbranch_vccz GOTF")
    spin(p, "BLK", 4)
    p.label("DUTY")
    p(f"s_cmp_ge_u32 s{S_DU}, 6")
    p(f"s_cselect_b32 s3, 6, 0")
    p(f"s_sub_u32 s3, s{S_DU}, s3")
    p("s_lshl_b32 s10, s3, 14")
    p(f"s_add_u32 s10, s10, {PART}")
    p("v_add_u32 v7, s10, v0")
    p("s_lshl_b32 m0, s3, 11")
    Lr = T + 56
    for w in range(8): p(f"ds_read_addtid_b32 v{Lr+w} offset:{LPL + w*256}")
    for i in range(6): p(f"ds_read_b128 v[{T+4*i}:{T+4*i+3}], v7 offset:{i*1024}")
    p("s_waitcnt lgkmcnt(6)")
    p(f"v_pk_add_f32 v[{Lr}:{Lr+1}], v[{Lr}:{Lr+1}], v[{Lr+2}:{Lr+3}]")
    p(f"v_pk_add_f32 v[{Lr+4}:{Lr+5}], v[{Lr+4}:{Lr+5}], v[{Lr+6}:{Lr+7}]")
    for i in range(6, 14): p(f"ds_read_b128 v[{T+4*i}:{T+4*i+3}], v7 offset:{i*1024}")
    p(f"v_pk_add_f32 v[{Lr}:{Lr+1}], v[{Lr}:{Lr+1}], v[{Lr+4}:{Lr+5}]")
    p(f"v_add_f32 v6, v{Lr}, v{Lr+1}")
    p("s_waitcnt lgkmcnt(10)")
    for i in range(14, 16): p(f"ds_read_b128 v[{T+4*i}:{T+4*i+3}], v7 offset:{i*1024}")
    p(f"v_subrev_u32 v7, s{S_LO}, v6")
    p(f"v_rcp_f32 v6, v6")
    p(f"v_cmp_le_u32 vcc, s{S_RNG}, v7")
    def padd(w):
        for j in range(4):
            p(f"v_pk_add_f32 v[{T+2*j}:{T+2*j+1}], v[{T+2*j}:{T+2*j+1}], v[{T+8*w+2*j}:{T+8*w+2*j+1}]")
    padd(1)
    p(f"s_or_b64 s[{S_BAD}:{S_BAD+1}], s[{S_BAD}:{S_BAD+1}], vcc")
    p(f"v_mul_f32 v6, v5, v6")
    for w in range(2, 8):
        p(f"s_waitcnt lgkmcnt({2*(7-w)})")
        padd(w)
    for j in range(4):
        p(f"v_pk_mul_f32 v[{T+2*j}:{T+2*j+1}], v[{T+2*j}:{T+2*j+1}], v[6:7] op_sel_hi:[1,0]")
    for j in range(4): p(f"v_cvt_pk_bf16_f32 v{T+8+j}, v{T+2*j}, v{T+2*j+1}")
    p(f"s_lshl_b32 s3, s{S_DU}, 10")
    p("v_add_u32 v7, s3, v0")
    p("v_mov_b32 v6, 1")
    p(f"s_lshl_b32 m0, s{S_DU}, 8")
    p(f"ds_write_b128 v7, v[{T+8}:{T+11}] offset:{QL}")
    p(f"ds_write_addtid_b32 v6 offset:{FF}")
    p(f"s_mov_b32 s3, s{S_DU}")
    p(f"s_add_u32 s{S_DU}, s{S_DU}, 4")
    p(f"s_cmp_eq_u32 s3, s{S_B}")
    p("s_cbranch_scc0 BLK")
    p.label("GOTF")
    if 'blk' in exp:
        p("s_waitcnt lgkmcnt(0)")
        for k in range(4, 10): p(f"s_mov_b32 s{70+2*k}, s{72+2*k}")
        p("s_memtime s[90:91]")
    p(f"ds_read_b128 v[{T+16}:{T+19}], v3")
    p(f"ds_read_b128 v[{T+20}:{T+23}], v3 offset:256")
    p("v_add_u32 v4, 256, v4")
    p(f"s_mov_b64 exec, {MSK}")
    p("v_add_u32 v3, 1024, v3")
    p("s_mov_b64 exec, -1")
    def bm(i):
        ct, ks = i >> 1, i & 1
        a = ACC + ct * 4
        p(f"v_mfma_f32_16x16x32_bf16 v[{a}:{a+3}], v[{ST+4*i}:{ST+4*i+3}], v[{T+16+4*ks}:{T+19+4*ks}], v[{a}:{a+3}]")
    p(f"s_cmp_eq_u32 s{S_AF}, 1")
    p("s_cbranch_scc1 GA1")
    p(f"s_cmp_eq_u32 s{S_AF}, 2")
    p("s_cbranch_scc1 GA2")
    p.label("GAR")
    p(f"s_mov_b32 s3, s{S_WB}")
    p(f"s_add_u32 s{S_WB}, s{S_WB}, 0x10000")
    p(f"s_cmp_eq_u32 s{S_B}, 6")
    p("s_waitcnt lgkmcnt(0)")
    p("s_cbranch_scc1 B6")
    for i in range(16):
        p("s_waitcnt vmcnt(15)")
        bm(i)
        p(wld(ST, i))
        if i & 3 == 3 and i < 15: p("s_add_u32 s3, s3, 4096")
    p(f"s_cmp_lt_u32 s{S_AF}, 3")
    p("s_cbranch_scc1 GB0")
    p.label("GBR")
    p(f"s_add_u32 s{S_B}, s{S_B}, 1")
    p(f"s_cmp_eq_u32 s{S_B}, 5")
    p("s_cbranch_scc0 BLK")
    p(f"s_lshl_b32 s10, s{S_SW}, 14")
    p(f"s_cmp_lt_u32 s{S_SW}, 2")
    p(f"s_mov_b32 s11, {PART}")
    p(f"s_cselect_b32 s11, {OAF}, s11")
    p(f"s_add_u32 s{S_W7}, s10, s11")
    p(f"s_mov_b32 m0, s{S_W7}")
    p(f"s_add_u32 s3, s{S_WB}, 0x10000")
    for i in range(16):
        p(f"buffer_load_dwordx4 v0, {W}, s3 offen offset:{(i&3)*1024} sc1 lds")
        if i & 3 == 3 and i < 15:
            p("s_add_u32 s3, s3, 4096")
            p("s_add_u32 m0, m0, 4096")
    p("s_branch BLK")
    p.label("B6")
    p(f"v_add_u32 v7, s{S_W7}, v0")
    p("s_waitcnt vmcnt(0)")
    for i in range(16):
        bm(i)
        if i >= 12: p(f"s_waitcnt lgkmcnt(11)")
        p(f"ds_read_b128 v[{ST+4*i}:{ST+4*i+3}], v7 offset:{i*1024}")
    p(f"s_cmp_lt_u32 s{S_AF}, 3")
    p("s_cbranch_scc1 GLATE")
    p.label("GLR")
    QD, QLr, QF_, QG, OA = T + 32, T + 33, T + 34, T + 35, T + 36
    p(f"s_and_b32 s10, s{S_SW}, 1")
    p(f"s_lshr_b32 s11, s{S_SW}, 1")
    p("s_lshl_b32 s3, s10, 10")
    p("s_lshl_b32 s12, s11, 9")
    p("s_add_u32 s3, s3, s12")
    p(f"s_add_u32 s3, s3, {PART + PS}")
    p(f"v_lshl_add_u32 v{QD}, v1, 3, s3")
    p("v_lshrrev_b32 v7, 1, v1")
    p("s_lshl_b32 s3, s11, 7")
    p(f"s_add_u32 s3, s3, {LPL + 2048}")
    p(f"v_lshl_add_u32 v{QLr}, v7, 2, s3")
    p("v_lshlrev_b32 v6, 2, v7")
    p(f"ds_bpermute_b32 v{QG}, v6, v5")
    p("s_lshl_b32 s3, s10, 3")
    p("s_add_u32 s3, s3, s12")
    p(f"s_add_u32 s3, s3, {QL + 7*1024}")
    p(f"v_lshl_add_u32 v{QF_}, v7, 4, s3")
    p("v_and_b32 v7, 1, v1")
    p(f"v_lshl_add_u32 v{QF_}, v7, 2, v{QF_}")
    p(f"v_lshlrev_b32 v{OA}, 8, v2")
    p("v_lshrrev_b32 v7, 4, v1")
    p(f"v_lshl_add_u32 v{OA}, v7, 4, v{OA}")
    p(f"s_lshl_b32 s{S_OO}, s{S_L}, 13")
    p(f"s_lshl_b32 s10, s{S_SW}, 8")
    p(f"s_add_u32 s{S_OO}, s{S_OO}, s10")
    p("v_lshlrev_b32 v4, 2, v1")
    p("v_mov_b32 v6, 1")
    p.stamp(11)
    p.label("LAST")
    p("s_waitcnt vmcnt(0) lgkmcnt(0)")
    p("s_barrier")
    p.hops_begin("TL")
    for i in range(4): p(f"ds_read2st64_b32 v[{T+24+2*i}:{T+25+2*i}], v{QLr} offset0:{2*i} offset1:{2*i+1}")
    for i in range(4): p(f"ds_read2st64_b64 v[{T+4*i}:{T+4*i+3}], v{QD} offset0:{8*i} offset1:{8*i+4}")
    p("s_waitcnt lgkmcnt(4)")
    p(f"v_pk_add_f32 v[{T+24}:{T+25}], v[{T+24}:{T+25}], v[{T+26}:{T+27}]")
    p(f"v_pk_add_f32 v[{T+28}:{T+29}], v[{T+28}:{T+29}], v[{T+30}:{T+31}]")
    p(f"v_pk_add_f32 v[{T+24}:{T+25}], v[{T+24}:{T+25}], v[{T+28}:{T+29}]")
    p(f"v_add_f32 v{T+24}, v{T+24}, v{T+25}")
    p(f"v_subrev_u32 v7, s{S_LO}, v{T+24}")
    p(f"v_rcp_f32 v{T+24}, v{T+24}")
    p(f"v_cmp_le_u32 vcc, s{S_RNG}, v7")
    p("s_waitcnt lgkmcnt(0)")
    n = 8
    while n > 1:
        n //= 2
        for i in range(n):
            p(f"v_pk_add_f32 v[{T+2*i}:{T+2*i+1}], v[{T+4*i}:{T+4*i+1}], v[{T+4*i+2}:{T+4*i+3}]")
        if n == 4: p(f"v_mul_f32 v{T+24}, v{QG}, v{T+24}")
    p(f"s_or_b64 s[{S_BAD}:{S_BAD+1}], s[{S_BAD}:{S_BAD+1}], vcc")
    p(f"v_pk_mul_f32 v[{T}:{T+1}], v[{T}:{T+1}], v[{T+24}:{T+25}] op_sel_hi:[1,0]")
    p(f"v_cvt_pk_bf16_f32 v{T}, v{T}, v{T+1}")
    p("s_cbranch_scc0 OKL")
    p(f"ds_write_b32 v4, v6 offset:{REDO}")
    p.label("OKL")
    p(f"ds_write_b32 v{QF_}, v{T}")
    p("s_waitcnt lgkmcnt(0)")
    p("s_barrier")
    p(f"ds_read_b128 v[{T+16}:{T+19}], v3")
    p(f"ds_read_b128 v[{T+20}:{T+23}], v3 offset:256")
    p(f"ds_read_b32 v7, v4 offset:{REDO}")
    p("s_waitcnt lgkmcnt(0)")
    p("v_cmp_ne_u32 vcc, 0, v7")
    p("s_cbranch_vccnz SLOWS")
    def fin(i):
        for j in range(4):
            p(f"v_cvt_pk_bf16_f32 v{T+4*i+j}, v{ACC+8*i+2*j}, v{ACC+8*i+2*j+1}")
        p(f"s_mov_b64 exec, {MSK}")
        p(f"buffer_store_dwordx4 v[{T+4*i}:{T+4*i+3}], v{OA}, s[{SOUT}:{SOUT+3}], s{S_OO} offen offset:{i*64}")
        if i < 3: p("s_mov_b64 exec, -1")
    for i in range(12): bm(i)
    fin(0)
    for i in range(12, 16): bm(i)
    for i in range(1, 4): fin(i)
    p.hops_end("TL_RET", HOP)
    p.stamp(12)
    if stamps: p("s_waitcnt vmcnt(0)")
    p.stamp(13); p.stamp(14, True)
    p.dump_stamps(15, SWS, 2, S_W, STAMP2, (4, 5))
    p("s_endpgm")

    G0 = T + 24
    def geta_loads(dst):
        p("v_lshrrev_b32 v7, 4, v1")
        p("v_lshlrev_b32 v7, 10, v7")
        p("v_lshl_add_u32 v7, v2, 2, v7")
        p("s_mov_b32 s3, s15")
        for ct in range(8):
            p(f"buffer_load_dwordx4 v[{dst+4*ct}:{dst+4*ct+3}], v7, {W}, s3 offen offset:{(ct&1)*512} sc1")
            if ct & 1 and ct < 7: p("s_add_u32 s3, s3, 4096")
    def geta_flag():
        p("v_lshrrev_b32 v7, 4, v1")
        p("v_lshlrev_b32 v7, 7, v7")
    def geta_add():
        for i in range(16): p(f"v_pk_add_f32 v[{ACC+2*i}:{ACC+2*i+1}], v[{ACC+2*i}:{ACC+2*i+1}], v[{G0+2*i}:{G0+2*i+1}]")
    p.label("GA1")
    geta_flag()
    p(f"buffer_load_dword v{G0}, v7, {W}, s14 offen sc1")
    p(f"s_lshl_b32 s3, s{S_L}, 13")
    p(f"buffer_load_dword v{G0+1}, v2, s[{SOUT}:{SOUT+3}], s3 offen")
    p("s_branch GAR")
    p.label("GA2")
    geta_loads(G0)
    p("s_branch GAR")
    p.label("GB0")
    p("s_waitcnt vmcnt(16)")
    p(f"s_cmp_eq_u32 s{S_AF}, 2")
    p("s_cbranch_scc1 GB2")
    p(f"s_cmp_eq_u32 s{S_AF}, 1")
    p("s_cbranch_scc1 GB1")
    p(f"s_cmp_ge_u32 s{S_B}, {GAB}")
    p(f"s_cselect_b32 s{S_AF}, 1, 0")
    p("s_branch GBR")
    p.label("GB1")
    p(f"v_cmp_ne_u32 vcc, s{S_NON}, v{G0}")
    p("s_cbranch_vccnz GBR")
    p(f"s_mov_b32 s{S_AF}, 2")
    p("s_branch GBR")
    p.label("GB2")
    p.pad(4)
    geta_add()
    p(f"s_mov_b32 s{S_AF}, 3")
    p("s_branch GBR")
    p.label("GLATE")
    geta_flag()
    flag_wait(p, "GLW", G0, 7, "s14", 4)
    geta_loads(G0)
    p("s_waitcnt vmcnt(0)")
    geta_add()
    p("s_branch GLR")

    p.label("SLOWS")
    p(f"s_cmp_eq_u32 s{S_MODE}, 0")
    p("s_cbranch_scc0 SLOWS2")
    p(f"s_mov_b32 s{S_MODE}, 1")
    p(f"s_mov_b32 s{S_B}, -1")
    p(f"v_mov_b32 v7, 0xff800000")
    p(f"s_lshl_b32 m0, s{S_SW}, 8")
    p.pad(8)
    p(f"ds_write_addtid_b32 v7 offset:{MXT}")
    geta_loads(ACC)
    p(f"s_lshl_b32 s{S_WB}, s{S_SW}, 14")
    p(f"s_add_u32 s{S_WB}, s{S_WB}, {WBF:#x}")
    p("s_waitcnt lgkmcnt(0)")
    p("s_barrier")
    p("s_barrier")
    p("s_branch SLOWS3")
    p.label("SLOWS2")
    for i in range(16): bm(i)
    p.label("SLOWS3")
    p(f"s_add_u32 s{S_B}, s{S_B}, 1")
    p(f"s_cmp_eq_u32 s{S_B}, 8")
    p("s_cbranch_scc1 SLOWF")
    load16(S_WB, ST)
    p(f"s_add_u32 s{S_WB}, s{S_WB}, 0x10000")
    p("s_branch LAST")
    p.label("SLOWF")
    p.pad(8)
    for i in range(4): fin(i)
    p("s_endpgm")

    p.label("SLOWA")
    S1 = S0 + 16; C = O0 + 16
    QO, MA, MX = S1, S1 + 1, S1 + 2
    p(f"v_lshrrev_b32 v{S1+3}, 2, v3")
    q_offset(p, QO, S1 + 4, S1 + 3)
    p(f"v_and_b32 v{MA}, 0x7c, v3")
    p(f"s_mov_b32 s10, s{S_QO}")
    p(f"s_mov_b32 s{S_B}, 0")
    p("s_barrier")
    p.label("SLOWM")
    p(f"buffer_load_dwordx4 v[{Q}:{Q+3}], v{QO}, {W}, s10 offen sc1")
    p(f"v_mov_b32 v{MX}, 0xff800000")
    p("s_waitcnt vmcnt(0)")
    for t in range(8):
        p(f"v_mfma_f32_32x32x16_bf16 v[{S0}:{S0+15}], {Kf(t)}, v[{Q}:{Q+3}], 0")
        for i in range(8): p(f"v_max3_f32 v{MX}, v{MX}, v{S0+2*i}, v{S0+2*i+1}")
    p(f"ds_max_f32 v{MA}, v{MX} offset:{MXT}")
    p(f"v_add_u32 v{MA}, 128, v{MA}")
    p("s_add_u32 s10, s10, 4096")
    p(f"s_add_u32 s{S_B}, s{S_B}, 1")
    p(f"s_cmp_lt_u32 s{S_B}, 8")
    p("s_cbranch_scc1 SLOWM")
    p(f"v_and_b32 v{MA}, 0x7c, v3")
    p(f"s_mov_b32 s10, s{S_QO}")
    p(f"s_mov_b32 s{S_B}, 0")
    p("s_waitcnt lgkmcnt(0)")
    p("s_barrier")
    p.label("SLOWP")
    p(f"buffer_load_dwordx4 v[{Q}:{Q+3}], v{QO}, {W}, s10 offen sc1")
    p(f"ds_read_b32 v{MX}, v{MA} offset:{MXT}")
    for r in range(9): p(f"v_mov_b32 v{O0+r}, 0")
    p("s_waitcnt vmcnt(0) lgkmcnt(0)")
    for r in range(16): p(f"v_sub_f32 v{C+r}, 0, v{MX}")
    for t in range(8):
        p(f"v_mfma_f32_32x32x16_bf16 v[{S0}:{S0+15}], {Kf(t)}, v[{Q}:{Q+3}], v[{C}:{C+15}]")
        for i in range(16): p(f"v_exp_f32 v{S0+i}, v{S0+i}")
        for s in range(2):
            p(f"v_smfmac_f32_32x32x32_bf16 v[{O0}:{O0+15}], {Vf(t,s)}, v[{S0+8*s}:{S0+8*s+7}], v2")
    for l in drain(O0, 7, False): p(l)
    p(f"v_add_u32 v{MA}, 128, v{MA}")
    p("s_add_u32 s10, s10, 4096")
    p(f"s_add_u32 s{S_B}, s{S_B}, 1")
    p("s_waitcnt lgkmcnt(0)")
    p("s_barrier")
    p("s_barrier")
    p(f"s_cmp_lt_u32 s{S_B}, 8")
    p("s_cbranch_scc1 SLOWP")
    p.label("END")
    p("s_endpgm")
    return p
```

```python
import sys, os
sys.path.insert(0, os.path.dirname(__file__))
import build, f
NAME = build.NAME
out = sys.argv[1] if len(sys.argv) > 1 and sys.argv[1].endswith(".s") else f"cdna_kernels/{NAME}.s"
for a in sys.argv[1:]:
    if "=" in a:
        k, v = a.split("=", 1)
        assert hasattr(f, k), k
        setattr(f, k, eval(v) if k not in ("PM", "OM") else v.replace("+", " "))
f.STG = "stg" in sys.argv
f.DIAGP = "diagp" in sys.argv
kn = NAME + "_kernel"
lst = "stamps" in sys.argv or "list" in sys.argv
build.build([(kn, f.gen(kn, stamps="stamps" in sys.argv, exp=" ".join(sys.argv[2:])), 256, 768, f.LDS, 168)], out, f.NOTES, single=not lst)
print("wrote", out)
```

```python
from asm import Prog
from common import *

NOTES = """
One launch, 256 workgroups of 12 waves, two phases; hand-offs between workgroups go through d_ws with
write-through (sc1) stores, flags holding a per-launch nonce (epoch word found in d_ws + 1, written back at the
end of the launch) and sc1 loads.
Phase 1: input projections, one workgroup per 64 rows x 4 heads.  Waves 8-11 stream x (kept resident) and the W
tiles into LDS (LDS-DMA); waves 0-3 run the bf16 MFMA GEMM, first the MQA query columns, then q|k|v of the linear
branch with the phi() / kv-partial epilogue; waves 4-7 compute k, v and the gate from the resident x or re-lay both
output-projection weights into MFMA fragment order.
Phase 2: one workgroup per 8 rows x 32 heads.  Waves 4-11 keep a 256-key slice of K/V in registers and stream the
8 query blocks (S = K Q^T by MFMA, v_exp_f32, P.V and the row sum by sparse MFMA); waves 0-3 finish the linear
attention branch, reduce/normalise, run both output projections and write d_out.
Softmax shift: the first pass uses the stand-in shift 0; every row sum l is checked at run time to lie in
[2^-80, 2^100) (no overflow, no loss by underflow); if any row of the workgroup fails, the workgroup
recomputes its rows with the true row max subtracted (labels SLOWA / SLOWS).
"""

XRES = 65536
WSL = [0, 24576, 131072]
XT0, XT1 = 49152, 155648
GATE_L = 57344
LPL = 0
QL = 12288
OAF = QL + 9 * 1024
MXT = OAF
CNT = 58368
FF = CNT + 8 * 256
OACNT = FF + 8 * 256
LDI1 = OACNT + 256
LDI2 = LDI1 + 256
QRDY = LDI2 + 256
GCNT = QRDY + 256
GCN2 = GCNT + 256
XCH = GCN2 + 256
REDO = XCH + 256
ZERO = REDO + 256
ZEND = ZERO + 1024
assert ZEND <= 65536 and ZERO >= 0xdddd and GATE_L + 1024 <= CNT and OAF + 32768 <= CNT
PART = 65536
PS = 16384
LDS = PART + 6 * PS
assert LDS <= 163840
IDX = 0xdddd
ZOFF = ZERO - IDX
HOP = 64
ROT = 7
STG = False
MSL = 4
FULLF = True
DIAGP = False
PM = 'sc1'
EFB = 7
POLB = 10
TOUCH = False
STB = 0
P2E = 1
NEARLY = 3
RGATE = 1
GAB = 2
BSL = 4
OM = ''
SOFF = 0
KGATE = 4
def cnt(n): return (IDX * n) & 0xffffffff

P_GATE, P_OUT, P_DBG, P_WS = 20, 22, 24, 26
SWS, SX, SW1, SW2 = 28, 32, 36, 40
SOUT, SE, SDBG = 32, 36, 40
S_W, S_A = 44, 45
S_RB, S_HG, S_KS, S_SOX, S_SO1, S_SO2, S_MW, S_N, S_NON = 46, 47, 49, 51, 54, 53, 55, 56, 57
S_L2E, S_EPS = 58, 60
S_L, S_RT, S_SUB, S_B, S_BAD, S_QO, S_MODE, S_WB, S_WA, S_DU = 46, 47, 48, 49, 50, 52, 53, 54, 55, 56
S_C8, S_LO, S_RNG, S_AF, S_MSK, S_W7, S_OO, S_RED, S_SP = 58, 59, 60, 61, 62, 64, 65, 66, 67
W = f"s[{SWS}:{SWS+3}]"

def srd(p, d, base, size):
    p(f"s_mov_b64 s[{d}:{d+1}], s[{base}:{base+1}]")
    p(f"s_mov_b32 s{d+2}, {size:#x}")
    p(f"s_mov_b32 s{d+3}, 0x20000")

def spin(p, lab, sleep, lim="0x100000"):
    p(f"s_add_u32 s{S_SP}, s{S_SP}, 1")
    p(f"s_cmp_gt_u32 s{S_SP}, {lim}")
    p("s_cbranch_scc1 END")
    p(f"s_sleep {sleep}")
    p(f"s_branch {lab}")

QB, QA, KA, VA = 64, 80, 96, 112

def wa(n):
    b = WSL[n % 3]
    return (11, 0) if b >= 65536 else (10, b)

def lds_wait(p, lab, row, val, vaddr, vtmp, sleep, op="ne"):
    p.label(lab)
    p(f"ds_read_b32 v{vtmp}, v{vaddr} offset:{row}")
    p("s_waitcnt lgkmcnt(0)")
    p(f"v_cmp_{op}_u32 vcc, {val}, v{vtmp}")
    p(f"s_cbranch_vccz {lab}_G")
    spin(p, lab, sleep)
    p.label(f"{lab}_G")

def steps():
    S = [(1, i) for i in range(4)] + [(2, i) for i in range(P2E, 8)]
    for i in range(P2E): S.insert(1 + 2 * i, (2, i))
    return S

def gemm(p, hooks):
    S = steps()
    def rd1(n, k):
        i = S[n][1]
        b = 136 + (k & 3) * 8; a, o = wa(n); hs, t = k >> 2, k & 3
        return [f"ds_read_b128 v[{b}:{b+3}], v{2+t} offset:{(2*i+hs)*8192}",
                f"ds_read_b64_tr_b16 v[{b+4}:{b+5}], v{a} offset:{o + hs*8192 + 16*t*128}",
                f"ds_read_b64_tr_b16 v[{b+6}:{b+7}], v{a} offset:{o + hs*8192 + (16*t+4)*128}"]
    def rd2(n, t):
        b = 32 + (t & 1) * 16; a, o = wa(n)
        X = [f"ds_read_b128 v[{b}:{b+3}], v{2+t} offset:{S[n][1]*8192}"]
        Wr = [[f"ds_read_b64_tr_b16 v[{b+4+4*u+2*q}:{b+5+4*u+2*q}], v{a} offset:{o + u*8192 + (16*t+4*q)*128}" for q in range(2)] for u in range(3)]
        return [X + Wr[0], Wr[1], Wr[2]]
    def head(n):
        return [rd1(n, k) for k in range(3)] if S[n][0] == 1 else rd2(n, 0)
    def bar(n):
        for l in hooks.get(('B', n), []): p(l)
        p("s_barrier")
        for l in hooks.get(('A', n), []): p(l)
        if STG and 1 <= n - SOFF <= 7: p.stamp(4 + n - SOFF, force=True)
        if n == 11: p.stamp(4)
    bar(0)
    p.stamp(3)
    for g in head(0):
        for l in g: p(l)
    for n, (ty, i) in enumerate(S):
        if ty == 1:
            for k in range(8):
                b = 136 + (k & 3) * 8
                p(f"s_waitcnt lgkmcnt({3*min(2, 7-k)})")
                if k == 7: bar(n + 1)
                p(f"v_mfma_f32_32x32x16_bf16 v[{QB}:{QB+15}], v[{b+4}:{b+7}], v[{b}:{b+3}], {'0' if (i, k) == (0, 0) else f'v[{QB}:{QB+15}]'}")
                if k + 3 < 8:
                    for l in rd1(n, k + 3): p(l)
            for g in head(n + 1):
                for l in g: p(l)
            continue
        for t in range(4):
            b = 32 + (t & 1) * 16
            X = f"v[{b}:{b+3}]"; Wv = [f"v[{b+4+4*u}:{b+7+4*u}]" for u in range(3)]
            first = (i == 0 and t == 0)
            M = [f"v_mfma_f32_32x32x16_bf16 v[{QA}:{QA+15}], {Wv[0]}, {X}, {'1.0' if first else f'v[{QA}:{QA+15}]'}",
                 f"v_mfma_f32_32x32x16_bf16 v[{KA}:{KA+15}], {X}, {Wv[1]}, {'1.0' if first else f'v[{KA}:{KA+15}]'}",
                 f"v_mfma_f32_32x32x16_bf16 v[{VA}:{VA+15}], {X}, {Wv[2]}, {'0' if first else f'v[{VA}:{VA+15}]'}"]
            last = (n == 11 and t == 3)
            nx = None if last else (rd2(n, t + 1) if t < 3 else head(n + 1))
            p("s_waitcnt lgkmcnt(4)"); p(M[0])
            for l in hooks.get((n, t), []): p(l)
            if t < 3:
                for l in nx[0]: p(l)
                p("s_waitcnt lgkmcnt(5)"); p(M[1])
                for l in nx[1]: p(l)
                p("s_waitcnt lgkmcnt(5)"); p(M[2])
                for l in nx[2]: p(l)
            else:
                p("s_waitcnt lgkmcnt(0)")
                if not last:
                    bar(n + 1)
                    for l in nx[0]: p(l)
                p(M[1])
                if nx:
                    for l in nx[1]: p(l)
                p(M[2])
                if nx:
                    for l in nx[2]: p(l)

def phi_half(p, b, F, T, hooks=()):
    hooks = list(hooks)
    for j in range(4):
        p(f"v_pk_fma_f32 v[{T+2*j}:{T+2*j+1}], v[{b+2*j}:{b+2*j+1}], s[{S_L2E}:{S_L2E+1}], s[{S_L2E}:{S_L2E+1}] neg_lo:[0,0,1] neg_hi:[0,0,1]")
    for j in range(8):
        p(f"v_exp_f32_e64 v{T+j}, v{T+j} clamp")
        if j in (0, 7) and hooks: p(hooks.pop(0))
    for j in range(8):
        p(f"v_max_f32 v{T+j}, v{T+j}, v{b+j}")
    for j in range(4):
        p(f"v_pk_add_f32 v[{T+2*j}:{T+2*j+1}], v[{T+2*j}:{T+2*j+1}], s[{S_EPS}:{S_EPS+1}]")
    for j in range(4):
        p(f"v_cvt_pk_bf16_f32 v{F+j}, v{T+2*j}, v{T+2*j+1}")
    assert not hooks

def pack(a, F):
    return [f"v_cvt_pk_bf16_f32 v{F+j}, v{a+2*j}, v{a+2*j+1}" for j in range(8)]

Q, K0, V0, S0, O0 = 4, 8, 40, 104, 136
def Kf(t): return f"v[{K0+4*t}:{K0+4*t+3}]"
def Vf(t, s): return f"v[{V0+8*t+4*s}:{V0+8*t+4*s+3}]"
def Sr(i): return S0 + 16 * (i & 1)
def Or(i): return O0 + 16 * (i & 1)

def drain(ob, b, count=True):
    slot = b % 6
    off = (slot & 3) * PS
    L = [f"ds_write_b128 v1, v[{ob}:{ob+3}] offset:{off}",
         f"ds_write_b128 v1, v[{ob+4}:{ob+7}] offset:{off + 1024}",
         f"ds_write_addtid_b32 v{ob+8} offset:{LPL + slot*2048}"]
    if count: L.append(f"ds_add_u32 v3, v2 offset:{CNT + b*256}")
    return L

def attn_main(p, ladder, pos=(1, 4, 10)):
    for b in range(8):
        for t in range(8):
            sc, sn = Sr(t), Sr(t + 1)
            extra = {}
            ob = Or(b + 1)
            def put(i, L):
                for k, l in enumerate(L): extra.setdefault(i + k, []).append(l)
            if t == 1 and b > 0:
                if b - 1 == 4: put(0, ["v_add_u32 v1, 0x10000, v1"])
                if b - 1 == 6:
                    put(0, ["v_subrev_u32 v1, 0x10000, v1"])
                    extra.setdefault(1, []).extend(["s_branch BP", "BPRET:"])
                put(2, drain(ob, b - 1))
                if b - 1 in ladder: put(6, [f"s_setprio {ladder[b-1]}"])
            if t == 2 and 0 < b < 7:
                put(2, [f"ds_read_b128 v[{ob}:{ob+3}], v2 offset:{ZOFF}",
                        f"ds_read_b128 v[{ob+4}:{ob+7}], v2 offset:{ZOFF}"])
                put(5, [f"ds_read_b32 v{ob+8}, v2 offset:{ZOFF}"])
            if t == 6 and 0 < b < 7:
                put(pos[1] + 1, [f"ds_read_b128 v[{Q}:{Q+3}], v0 offset:{(b+1)*1024}"])
            if b == 0:
                put(pos[1], [f"v_permlane16_swap_b32 v{V0+8*t+r}, v{V0+8*t+4+r}" for r in range(4)])
            if t == 7 and b == 0:
                extra.setdefault(1, []).extend(["s_branch QW", "QWRET:"])
            for i in range(16):
                p(f"v_exp_f32 v{sc+i}, v{sc+i}")
                if i == pos[0] and (b, t) != (0, 0):
                    op = Or(b) if t > 0 else Or(b + 1)
                    p(f"v_smfmac_f32_32x32x32_bf16 v[{op}:{op+15}], {Vf((t-1)&7,1)}, v[{sn+8}:{sn+15}], v2")
                if i == pos[1] and (b, t) != (7, 7):
                    if t == 7: p("s_waitcnt vmcnt(0) lgkmcnt(0)" if b == 0 else "s_waitcnt lgkmcnt(0)")
                    elif b == 0: p(f"s_waitcnt vmcnt({2*(6-t)+1})")
                    p(f"v_mfma_f32_32x32x16_bf16 v[{sn}:{sn+15}], {Kf((t+1)&7)}, v[{Q}:{Q+3}], 0")
                if i == pos[2]:
                    oc = Or(b)
                    p(f"v_smfmac_f32_32x32x32_bf16 v[{oc}:{oc+15}], {Vf(t,0)}, v[{sc}:{sc+7}], v2")
                for l in extra.get(i, []): p(l)
        if b == 0: p.stamp(6)

def q_offset(p, dst, tmp, lane):
    p(f"v_bfe_u32 v{dst}, v{lane}, 3, 2")
    p(f"v_lshlrev_b32 v{dst}, 10, v{dst}")
    p(f"v_and_b32 v{tmp}, 0x27, v{lane}")
    p(f"v_lshl_add_u32 v{dst}, v{tmp}, 4, v{dst}")

def logical_id(p):
    p("s_and_b32 s3, s2, 7")
    p("s_lshl_b32 s3, s3, 5")
    p(f"s_lshr_b32 s{S_L}, s2, 3")
    p(f"s_add_u32 s{S_L}, s{S_L}, s3")
    p(f"s_lshr_b32 s{S_RT}, s{S_L}, 2")
    p(f"s_and_b32 s{S_SUB}, s{S_L}, 3")
    p(f"s_lshl_b32 s{S_QO}, s{S_RT}, 15")
    p(f"s_lshl_b32 s10, s{S_SUB}, 7")
    p(f"s_add_u32 s{S_QO}, s{S_QO}, s10")

def attn_setup(p, second=False):
    logical_id(p)
    p(f"s_sub_u32 s{S_A}, s{S_W}, 4")
    p("v_lshlrev_b32 v3, 2, v1")
    q_offset(p, 112, 113, 1)
    p("v_lshlrev_b32 v0, 4, v1")
    p("v_lshrrev_b32 v114, 5, v1")
    p("v_and_b32 v115, 15, v1")
    p("v_lshl_add_u32 v114, v114, 4, v115")
    p("v_lshlrev_b32 v114, 4, v114")
    p("v_bfe_u32 v115, v1, 4, 1")
    p("v_lshl_add_u32 v114, v115, 9, v114")
    p(f"s_lshl_b32 s11, s{S_A}, 13")
    p(f"s_add_u32 s12, s11, {VF:#x}")
    p(f"s_add_u32 s11, s11, {KF:#x}")
    p("s_add_u32 s13, s11, 4096")
    p("s_add_u32 s14, s12, 4096")
    p(f"s_lshl_b32 s18, s{S_A}, 12")
    p(f"s_add_u32 s18, s18, {EF:#x}")
    p("v_and_b32 v115, 15, v1")
    p("v_lshl_add_u32 v118, v115, 8, s18")
    if second:
        p(f"s_lshl_b32 s19, s{S_A}, 13")
        p(f"s_add_u32 s19, s19, {EF - 4*8192 - 32*256 + 128:#x}")
        p("v_lshl_add_u32 v115, v1, 8, s19")
    else:
        p(f"s_lshr_b32 s19, s{S_L}, 3")
        p("s_lshl_b32 s19, s19, 10")
        p(f"s_add_u32 s19, s19, {EF:#x}")
        p("v_and_b32 v115, 7, v1")
        p("v_lshl_add_u32 v115, v115, 7, s19")
    p("v_cmp_lt_u32 vcc, 31, v1")
    p("v_cndmask_b32 v118, v118, v115, vcc")
    p("v_and_b32 v116, 11, v1")
    p("v_cmp_eq_u32 vcc, 0, v116")
    p("v_mov_b32 v117, 0x3f803f80")
    p("v_cndmask_b32 v116, 0, v117, vcc")
    p("v_mov_b32 v117, v116")
    for t in range(8):
        for r in range(2): p(f"v_pk_mov_b32 v[{V0+8*t+4+2*r}:{V0+8*t+5+2*r}], v[116:117], v[116:117]")
    for r in range(9): p(f"v_mov_b32 v{O0+r}, 0")
    for r in range(9): p(f"v_mov_b32 v{O0+16+r}, 0")
    p(f"v_mov_b32 v2, {IDX:#x}")
    p(f"s_lshl_b32 s3, s{S_A}, 11")
    p(f"s_add_u32 s3, s3, {PART}")
    p("v_add_u32 v1, s3, v0")
    p(f"s_lshl_b32 m0, s{S_A}, 8")

def kv_loads(p, t0, t1):
    if t0 == 0: p(f"buffer_load_dwordx4 v[{Q}:{Q+3}], v112, {W}, s{S_QO} offen sc1")
    for t in range(t0, t1):
        p(f"buffer_load_dwordx4 {Kf(t)}, v0, {W}, s{11 if t < 4 else 13} offen offset:{(t&3)*1024} sc1")
        p(f"buffer_load_dwordx4 {Vf(t,0)}, v114, {W}, s{12 if t < 4 else 14} offen offset:{(t&3)*1024} sc1")

def flag_store(p, vd, vl4, so):
    p("s_mov_b32 exec_hi, 0" if FULLF else "s_mov_b64 exec, 1")
    p(f"buffer_store_dword v{vd}, v{vl4}, {W}, s{so} offen sc1")
    p("s_mov_b64 exec, -1")

def flag_wait(p, lab, vt, va, so, sleep):
    p.label(lab)
    p(f"buffer_load_dword v{vt}, v{va}, {W}, {so} offen {PM}")
    p("s_waitcnt vmcnt(0)")
    if DIAGP and lab == "OMF":
        p("s_cmp_eq_u32 s69, 0"); p("s_cbranch_scc0 DG1"); p.stamp(8); p.label("DG1"); p("s_add_u32 s69, s69, 1")
    p(f"v_cmp_ne_u32 vcc, s{S_NON}, v{vt}")
    p(f"s_cbranch_vccz {lab}_G")
    p("s_mov_b64 exec, vcc")
    spin(p, lab, sleep)
    p.label(f"{lab}_G")
    p("s_mov_b64 exec, -1")

def gen(name, stamps=False, exp=''):
    ladder = {4: 2, 5: 1, 6: 0}
    p = Prog()
    p.stamps = stamps
    p.label(name)
    p.stamp(0, True); p.stamp(1)
    p("s_cmp_ge_u32 s2, 256")
    p("s_cbranch_scc1 END")
    p("s_load_dwordx16 s[4:19], s[0:1], 0")
    p("s_load_dwordx8 s[20:27], s[0:1], 64")
    p("v_lshrrev_b32 v21, 6, v0")
    p("v_and_b32 v1, 63, v0")
    p(f"v_readfirstlane_b32 s{S_W}, v21")
    p("s_bfe_u32 s3, s2, 0x30003")
    p("s_lshr_b32 s61, s2, 6")
    p(f"s_and_b32 s{S_RB}, s2, 6")
    p(f"s_lshl_b32 s{S_RB}, s{S_RB}, 2")
    p(f"s_add_u32 s{S_RB}, s{S_RB}, s3")
    p(f"s_and_b32 s{S_HG}, s2, 1")
    p(f"s_lshl_b32 s{S_HG}, s{S_HG}, 2")
    p(f"s_add_u32 s{S_HG}, s{S_HG}, s61")
    p(f"s_add_u32 s{S_KS}, s3, s61")
    p(f"s_lshl_b32 s{S_KS}, s{S_KS}, 1")
    p("s_lshr_b32 s60, s3, 2")
    p(f"s_add_u32 s{S_KS}, s{S_KS}, s60")
    p(f"s_and_b32 s{S_KS}, s{S_KS}, {ROT}")
    p(f"s_mov_b32 s{S_SP}, 0")
    p(f"s_mov_b32 s{SWS+2}, {WS_SIZE:#x}")
    p(f"s_mov_b32 s{SWS+3}, 0x20000")
    p(f"s_and_b32 s{S_A}, s{S_W}, 3")
    p(f"s_cmp_lt_u32 s{S_W}, 8")
    p("s_cbranch_scc1 NOTLD")
    p("s_setprio 2")
    p("v_lshrrev_b32 v20, 3, v1")
    p("v_and_b32 v21, 7, v1")
    p("v_lshrrev_b32 v22, 4, v1")
    p(f"s_lshl_b32 s3, s{S_A}, 4")
    p("v_add_u32 v20, s3, v20")
    p("v_xor_b32 v23, v21, v22")
    p("v_lshlrev_b32 v23, 4, v23")
    p("v_lshl_add_u32 v23, v20, 10, v23")
    p(f"s_lshl_b32 s3, s{S_RB}, 16")
    p("v_add_u32 v12, s3, v23")
    p("v_xor_b32 v13, 64, v12")
    p("v_add_u32 v13, 0x2000, v13")
    p("v_and_b32 v22, 1, v22")
    p("v_lshlrev_b32 v22, 2, v22")
    p("v_xor_b32 v21, v21, v22")
    p("v_lshlrev_b32 v21, 4, v21")
    p(f"s_lshl_b32 s3, s{S_HG}, 7")
    p("v_add_u32 v21, s3, v21")
    p("v_lshl_add_u32 v16, v20, 10, v21")
    p("v_add_u32 v17, 0x2000, v16")
    p(f"s_lshl_b32 s{S_MW}, s{S_A}, 11")
    p(f"s_mov_b32 s{SX+2}, {2048*1024:#x}")
    p(f"s_mov_b32 s{SX+3}, 0x20000")
    p(f"s_mov_b32 s{SW2+2}, {512*1024:#x}")
    p(f"s_mov_b32 s{SW2+3}, 0x20000")
    p(f"s_mov_b32 s62, s{S_KS}")
    p("s_waitcnt lgkmcnt(0)")
    p(f"s_mov_b64 s[{SX}:{SX+1}], s[4:5]")
    p(f"s_mov_b64 s[{SW2}:{SW2+1}], s[12:13]")
    for n, (ty, i) in enumerate(steps()):
        sl = WSL[n % 3]
        if ty == 1:
            for hs in range(2):
                p(f"s_lshl_b32 s{S_SOX}, s{S_KS}, 7")
                p(f"s_lshl_b32 s{S_SO2}, s{S_KS}, 16")
                for e in range(2):
                    p(f"s_add_u32 m0, s{S_MW}, {XRES + (2*i+hs)*8192 + e*1024:#x}")
                    p(f"buffer_load_dwordx4 v{12+e}, s[{SX}:{SX+3}], s{S_SOX} offen lds")
                for e in range(2):
                    p(f"s_add_u32 m0, s{S_MW}, {sl + hs*8192 + e*1024:#x}")
                    p(f"buffer_load_dwordx4 v{16+e}, s[{SW2}:{SW2+3}], s{S_SO2} offen lds")
                p(f"s_add_u32 s{S_KS}, s{S_KS}, 1")
                p(f"s_and_b32 s{S_KS}, s{S_KS}, 7")
        else:
            p(f"s_mul_i32 s{S_SO1}, s62, {64*3072:#x}")
            for u in range(3):
                for e in range(2):
                    p(f"s_add_u32 m0, s{S_MW}, {sl + u*8192 + e*1024:#x}")
                    p(f"buffer_load_dwordx4 v{18+e}, s[{SW1}:{SW1+3}], s{S_SO1} offen lds")
                if u < 2: p(f"s_add_u32 s{S_SO1}, s{S_SO1}, 1024")
            p("s_add_u32 s62, s62, 1")
            p("s_and_b32 s62, s62, 7")
        if n == 0:
            p("s_setprio 0")
            p("s_movk_i32 s60, 3072")
            p("v_mad_u32_u24 v18, v20, s60, v21")
            p(f"v_add_u32 v19, {8*3072}, v18")
            srd(p, SW1, 6, 512 * 3072)
            p(f"s_mov_b64 s[{SWS}:{SWS+1}], s[{P_WS}:{P_WS+1}]")
        else:
            if n == 1: attn_setup(p, True)
            p(f"s_waitcnt vmcnt({8 if ty == 1 else 6})")
            p("s_barrier")
    p("v_mov_b32 v27, 0")
    p(f"s_mov_b32 s3, {EPO:#x}")
    p(f"buffer_load_dword v26, v27, {W}, s3 offen sc1")
    p("s_waitcnt vmcnt(0)")
    p("s_barrier")
    p("v_add_u32 v26, 1, v26")
    p("s_setprio 3")
    p(f"v_readfirstlane_b32 s{S_NON}, v26")
    p(f"s_lshl_b32 m0, s{S_A}, 8")
    flag_wait(p, "YMF", 120, 118, "0", MSL)
    lds_wait(p, "YW", LDI1, f"{cnt(4):#x}", 3, 120, 2)
    kv_loads(p, 0, 8)
    p(f"ds_add_u32 v3, v2 offset:{LDI2}")
    p("s_branch GO")

    p.label("NOTLD")
    p(f"s_cmp_lt_u32 s{S_W}, 4")
    p("s_cbranch_scc1 GEMM")
    p("s_setprio 1")
    L16, R_, C_, KG, L15, A0, A1, ZR, EP = 120, 121, 122, 123, 124, 125, 126, 127, 128
    p(f"v_lshlrev_b32 v{L16}, 4, v1")
    p(f"v_bfe_u32 v{R_}, v1, 2, 2")
    p(f"v_and_b32 v{C_}, 3, v1")
    p(f"v_lshrrev_b32 v{KG}, 4, v1")
    p(f"v_and_b32 v{L15}, 15, v1")
    p(f"v_mov_b32 v{ZR}, 0")
    p(f"s_mov_b32 s{SE+3}, 0x20000")
    p(f"s_mov_b32 s3, {EPO:#x}")
    p(f"s_lshr_b32 s48, s{S_HG}, 1")
    p("s_waitcnt lgkmcnt(0)")
    p(f"s_mov_b64 s[{SWS}:{SWS+1}], s[{P_WS}:{P_WS+1}]")
    p(f"buffer_load_dword v{EP}, v{ZR}, {W}, s3 offen sc1")
    S_MD, S_TL, S_SO, S_SO_2 = 50, 51, 64, 65
    p(f"s_bitcmp1_b32 s{S_HG}, 0")
    p("s_cbranch_scc1 LAY")
    p("s_cmp_lt_u32 s48, 2")
    p(f"s_cselect_b64 s[{SE}:{SE+1}], s[14:15], s[16:17]")
    p(f"s_mov_b32 s{SE+2}, 0x4000")
    p(f"s_lshl_b32 s3, s{S_A}, 12")
    p(f"s_cmp_lt_u32 s{S_A}, 2")
    p(f"s_mov_b32 s63, {XT1 - 8192:#x}")
    p(f"s_cselect_b32 s63, {XT0:#x}, s63")
    p("s_add_u32 m0, s3, s63")
    p("s_lshr_b32 s63, s48, 1")
    for j in range(4):
        p(f"buffer_load_dwordx4 v{L16}, s[{SE}:{SE+3}], s3 offen offset:{j*1024} lds")
    srd(p, SE, P_GATE, 1024)
    p(f"s_mov_b32 m0, {GATE_L:#x}")
    p(f"s_and_b32 s{S_TL}, s48, 1")
    p(f"buffer_load_dwordx4 v{L16}, s[{SE}:{SE+3}], 0 offen lds")
    p(f"s_lshl_b32 s{S_TL}, s{S_TL}, 1")
    p(f"s_add_u32 s{S_TL}, s{S_TL}, s{S_A}")
    p(f"s_cmp_lt_u32 s{S_A}, 2")
    p(f"s_cselect_b32 s{S_MD}, s63, s{S_A}")
    p(f"s_cselect_b32 s{S_TL}, s{S_TL}, s48")
    p("v_bfe_u32 v108, v1, 1, 3")
    p(f"v_xor_b32 v108, v108, v{KG}")
    p("v_lshlrev_b32 v108, 4, v108")
    p(f"v_lshl_add_u32 v108, v{L15}, 7, v108")
    p(f"s_lshl_b32 s3, s{S_TL}, 11")
    p(f"s_add_u32 s3, s3, {XRES:#x}")
    p("v_add_u32 v108, s3, v108")
    p("v_xor_b32 v109, 64, v108")
    p(f"v_lshl_add_u32 v129, v{KG}, 3, v{R_}")
    p("v_lshlrev_b32 v129, 5, v129")
    p(f"v_lshl_add_u32 v129, v{C_}, 3, v129")
    p(f"v_lshlrev_b32 v130, 4, v{KG}")
    for j in range(4): p(f"v_mov_b32 v{104+j}, 0")
    p(f"s_lshl_b32 s3, s{S_RB}, 2")
    p(f"s_add_u32 s62, s{S_TL}, s3")
    p("s_lshr_b32 s3, s62, 1")
    p("s_lshl_b32 s3, s3, 10")
    p("s_and_b32 s63, s62, 1")
    p(f"s_add_u32 s66, s{S_MD}, 8")
    p("s_lshl_b32 s63, s63, s66")
    p("s_add_u32 s3, s3, s63")
    p(f"s_lshl_b32 s63, s{S_MD}, 16")
    assert VF == KF + 0x10000
    p("s_add_u32 s3, s3, s63")
    p(f"s_add_u32 s{S_SO}, s3, {KF:#x}")
    p("s_lshl_b32 s3, s62, 6")
    p(f"s_add_u32 s{S_SO_2}, s3, {GT:#x}")
    p(f"v_and_b32 v110, 1, v{KG}")
    p(f"v_lshrrev_b32 v111, 1, v{KG}")
    p(f"v_lshl_add_u32 v{A0}, v110, 5, v{L15}")
    p(f"v_lshlrev_b32 v{A0}, 4, v{A0}")
    p(f"v_lshl_add_u32 v{A0}, v111, 3, v{A0}")
    p(f"v_lshl_add_u32 v{A1}, v111, 4, v{L15}")
    p(f"v_lshlrev_b32 v{A1}, 4, v{A1}")
    p(f"v_lshl_add_u32 v{A1}, v110, 3, v{A1}")
    p(f"s_cmp_eq_u32 s{S_MD}, 1")
    p("s_cselect_b64 vcc, -1, 0")
    p(f"s_cselect_b32 s63, 1.0, {f2u(0.25*LOG2E):#x}")
    p(f"v_cndmask_b32 v{A0}, v{A0}, v{A1}, vcc")
    p("s_branch ASET")
    p.label("LAY")
    S_U, S_HP, S_SWU = 62, 63, 53
    p(f"s_mov_b32 s{S_MD}, 4")
    p(f"s_lshl_b32 s{S_U}, s{S_RB}, 2")
    p(f"s_add_u32 s{S_U}, s{S_U}, s48")
    p(f"s_cmp_lt_u32 s{S_U}, 64")
    p(f"s_cselect_b64 s[{SE}:{SE+1}], s[18:19], s[8:9]")
    p(f"s_mov_b32 s{SE+2}, 0x80000")
    p(f"s_bfe_u32 s{S_HP}, s{S_U}, 0x40002")
    p(f"s_and_b32 s{S_SWU}, s{S_U}, 3")
    p(f"s_lshl_b32 s3, s{S_HP}, 15")
    p(f"s_lshl_b32 s65, s{S_SWU}, 8")
    p("s_add_u32 s3, s3, s65")
    p(f"s_lshl_b32 s65, s{S_A}, 13")
    p("s_add_u32 s3, s3, s65")
    p(f"v_lshlrev_b32 v108, 4, v{L15}")
    p(f"v_lshl_add_u32 v108, v{KG}, 10, v108")
    p(f"s_lshl_b32 s65, s{S_A}, 11")
    p(f"s_add_u32 m0, s65, {XT0}")
    p("s_add_u32 s65, s3, 4096")
    p(f"buffer_load_dwordx4 v108, s[{SE}:{SE+3}], s3 offen lds")
    p("s_add_u32 m0, m0, 1024")
    p("v_lshlrev_b32 v109, 2, v1")
    p(f"buffer_load_dwordx4 v108, s[{SE}:{SE+3}], s65 offen lds")
    p(f"s_cmp_eq_u32 s{S_A}, 1")
    p("s_cbranch_scc0 NOMK")
    p(f"s_lshl_b32 s65, s{S_U}, 8")
    p(f"s_add_u32 s65, s65, {KVF:#x}")
    p("v_mov_b32 v110, -1")
    p(f"buffer_store_dword v110, v109, {W}, s65 offen sc1")
    p.label("NOMK")
    p(f"v_lshrrev_b32 v{A0}, 1, v{KG}")
    p(f"v_and_b32 v{A1}, 1, v{KG}")
    p(f"s_cmp_lt_u32 s{S_U}, 64")
    p("s_cbranch_scc0 TA1")
    p(f"v_lshlrev_b32 v{A0}, 4, v{A0}")
    p(f"v_lshl_add_u32 v{A0}, v{A1}, 2, v{A0}")
    p(f"v_add_u32 v{A0}, v{A0}, v{R_}")
    p(f"v_lshlrev_b32 v{A0}, 8, v{A0}")
    p(f"v_lshl_add_u32 v{A0}, v{C_}, 4, v{A0}")
    p(f"v_add_u32 v{A1}, 8, v{A0}")
    p(f"s_lshr_b32 s3, s{S_HP}, 1")
    p("s_lshl_b32 s3, s3, 2")
    p(f"s_add_u32 s3, s3, s{S_SWU}")
    p("s_lshl_b32 s3, s3, 14")
    p(f"s_and_b32 s65, s{S_HP}, 1")
    p("s_lshl_b32 s65, s65, 10")
    p("s_add_u32 s3, s3, s65")
    p(f"s_lshl_b32 s65, s{S_A}, 12")
    p("s_add_u32 s3, s3, s65")
    p(f"s_add_u32 s{S_SO}, s3, {WBF:#x}")
    p(f"s_add_u32 s{S_SO_2}, s{S_SO}, 2048")
    p("s_branch TA2")
    p.label("TA1")
    p(f"v_lshl_add_u32 v{A0}, v{A0}, 2, v{R_}")
    p(f"v_lshlrev_b32 v{A0}, 8, v{A0}")
    p(f"v_lshl_add_u32 v{A0}, v{A1}, 5, v{A0}")
    p(f"v_lshl_add_u32 v{A0}, v{C_}, 3, v{A0}")
    p(f"v_add_u32 v{A1}, 4096, v{A0}")
    p(f"s_lshl_b32 s3, s{S_SWU}, 17")
    p(f"s_lshl_b32 s65, s{S_HP}, 11")
    p("s_add_u32 s3, s3, s65")
    p(f"s_lshl_b32 s65, s{S_A}, 15")
    p("s_add_u32 s3, s3, s65")
    p(f"s_add_u32 s{S_SO}, s3, {WAF:#x}")
    p(f"s_add_u32 s{S_SO_2}, s{S_SO}, 1024")
    p.label("TA2")
    p(f"s_lshl_b32 s3, s{S_A}, 6")
    p(f"v_add_u32 v{A0}, s3, v{A0}")
    p(f"v_add_u32 v{A1}, s3, v{A1}")
    p.label("ASET")
    attn_setup(p)
    p(f"s_mov_b32 s{S_N}, 0")
    p("s_waitcnt vmcnt(0)")
    p(f"v_add_u32 v{EP}, 1, v{EP}")
    p("s_nop 0")
    p(f"v_readfirstlane_b32 s{S_NON}, v{EP}")
    p.label("AUXL")
    for hs in range(2):
        p(f"s_lshl_b32 s3, s{S_KS}, 11")
        p(f"s_add_u32 s62, s3, {XT0:#x}")
        p(f"s_add_u32 s3, s3, {XT1 - 8192:#x}")
        p(f"s_cmp_lt_u32 s{S_KS}, 4")
        p("s_cselect_b32 s3, s62, s3")
        p(f"v_add_u32 v{131+hs}, s3, v129")
        p(f"s_lshl_b32 s3, s{S_KS}, 7")
        p(f"v_add_u32 v{133+hs}, s3, v130")
        p(f"s_add_u32 s{S_KS}, s{S_KS}, 1")
        p(f"s_and_b32 s{S_KS}, s{S_KS}, 7")
    p(f"s_add_u32 s{S_N}, s{S_N}, 1")
    p("s_barrier")
    if P2E:
        p(f"s_sub_u32 s3, s{S_N}, 2")
        p(f"s_cmp_lt_u32 s3, {P2E}")
        p("s_cbranch_scc0 AUXE")
        p("s_barrier")
        p.label("AUXE")
    p(f"s_cmp_ge_u32 s{S_MD}, 3")
    p("s_cbranch_scc1 AUXC")
    for i in range(4): p(f"ds_read_b128 v[{8+4*i}:{11+4*i}], v{108+(i&1)} offset:{(i>>1)*8192}")
    p(f"s_cmp_eq_u32 s{S_MD}, 2")
    p("s_cbranch_scc1 AUXR")
    for i in range(4):
        p(f"ds_read_b64_tr_b16 v[{24+4*i}:{25+4*i}], v{131+(i>>1)} offset:{(i&1)*1024}")
        p(f"ds_read_b64_tr_b16 v[{26+4*i}:{27+4*i}], v{131+(i>>1)} offset:{(i&1)*1024+128}")
    p("s_branch AUXM")
    p.label("AUXR")
    for i in range(4): p(f"ds_read_b128 v[{24+4*i}:{27+4*i}], v{133+(i>>1)} offset:{GATE_L + (i&1)*64}")
    p.label("AUXM")
    p("v_add_u32 v108, 0x4000, v108")
    p("v_add_u32 v109, 0x4000, v109")
    p("s_waitcnt lgkmcnt(0)")
    p(f"s_cmp_eq_u32 s{S_MD}, 1")
    p("s_cbranch_scc1 AUXB")
    for i in range(4):
        p(f"v_mfma_f32_16x16x32_bf16 v[104:107], v[{24+4*i}:{27+4*i}], v[{8+4*i}:{11+4*i}], v[104:107]")
    p("s_branch AUXC")
    p.label("AUXB")
    for i in range(4):
        p(f"v_mfma_f32_16x16x32_bf16 v[104:107], v[{8+4*i}:{11+4*i}], v[{24+4*i}:{27+4*i}], v[104:107]")
    p.label("AUXC")
    p(f"s_cmp_lt_u32 s{S_N}, 4")
    p("s_cbranch_scc1 AUXL")
    if STB: p("s_barrier")
    p.pad(6)
    p(f"s_cmp_lt_u32 s{S_MD}, 2")
    p("s_cbranch_scc1 AUXK")
    p(f"s_cmp_eq_u32 s{S_MD}, 3")
    p("s_cbranch_scc1 AUXD")
    p(f"s_cmp_eq_u32 s{S_MD}, 4")
    p("s_cbranch_scc1 AUXT")
    p(f"v_mul_f32 v104, {f2u(-LOG2E):#x}, v104")
    p("v_exp_f32 v104, v104")
    p("v_add_f32 v104, 1.0, v104")
    p("v_rcp_f32 v104, v104")
    p("s_mov_b64 exec, 0xffff")
    p(f"buffer_store_dword v104, v3, {W}, s{S_SO_2} offen sc1")
    p("s_mov_b64 exec, -1")
    p("s_branch AUXD")
    p.label("AUXK")
    for j in range(4): p(f"v_mul_f32 v{104+j}, s63, v{104+j}")
    for j in range(2): p(f"v_cvt_pk_bf16_f32 v{110+j}, v{104+2*j}, v{105+2*j}")
    p(f"buffer_store_dwordx2 v[110:111], v{A0}, {W}, s{S_SO} offen sc1")
    p("s_branch AUXD")
    p.label("AUXT")
    for k, a in enumerate((A0, A1)):
        p(f"ds_read_b64_tr_b16 v[{104+4*k}:{105+4*k}], v{a} offset:{XT0}")
        p(f"ds_read_b64_tr_b16 v[{106+4*k}:{107+4*k}], v{a} offset:{XT0 + 2048}")
    p("s_waitcnt lgkmcnt(0)")
    p(f"buffer_store_dwordx4 v[104:107], v0, {W}, s{S_SO} offen sc1")
    p(f"buffer_store_dwordx4 v[108:111], v0, {W}, s{S_SO_2} offen sc1")
    p.label("AUXD")
    p.stamp(8)
    for n in range(4 + P2E + STB, POLB + 1):
        if n == EFB: p("s_waitcnt vmcnt(0)")
        p("s_barrier")
    p("s_setprio 3")
    p.stamp(2)
    if DIAGP: p("s_mov_b32 s69, 0")
    if POLB < 11:
        p(f"buffer_load_dword v120, v118, {W}, 0 offen {PM}")
        for n in range(POLB + 1, 11): p("s_barrier")
        p("s_waitcnt vmcnt(0)")
        p(f"v_cmp_ne_u32 vcc, s{S_NON}, v120")
        p("s_cbranch_vccnz OLATE")
        p.stamp(7)
        kv_loads(p, 0, NEARLY)
        p("s_barrier")
        p("s_branch OREST")
        p.label("OLATE")
        p("s_barrier")
        p("s_mov_b64 exec, vcc")
    flag_wait(p, "OMF", 120, 118, "0", MSL)
    p.stamp(7)
    kv_loads(p, 0, NEARLY)
    p.label("OREST")
    kv_loads(p, NEARLY, 8)
    p(f"ds_add_u32 v3, v2 offset:{LDI1}")
    p(f"s_lshl_b32 s3, s{S_A}, 13")
    p(f"s_add_u32 s3, s3, s{S_QO}")
    p(f"s_lshl_b32 s10, s{S_A}, 11")
    p(f"s_add_u32 m0, s10, {QL}")
    p("s_add_u32 s11, s3, 4096")
    p(f"buffer_load_dwordx4 v112, {W}, s3 offen sc1 lds")
    p("s_add_u32 m0, m0, 1024")
    p("s_nop 0")
    p(f"buffer_load_dwordx4 v112, {W}, s11 offen sc1 lds")
    p(f"s_lshl_b32 m0, s{S_A}, 8")
    p.label("GO")
    p(f"v_add_u32 v0, {QL}, v0")
    p.stamp(9)
    p("s_waitcnt vmcnt(15)")
    p(f"v_mfma_f32_32x32x16_bf16 v[{S0}:{S0+15}], {Kf(0)}, v[{Q}:{Q+3}], 0")
    p.stamp(3)
    p.stamp(8, True)
    attn_main(p, ladder)
    ob = Or(7)
    p(f"v_smfmac_f32_32x32x32_bf16 v[{ob}:{ob+15}], {Vf(7,1)}, v[{Sr(1)+8}:{Sr(1)+15}], v2")
    for l in drain(ob, 7, False): p(l)
    p("s_waitcnt lgkmcnt(0)")
    p.stamp(4)
    p("s_barrier")
    p.stamp(5, True)
    p("s_barrier")
    p(f"ds_read_b32 v4, v3 offset:{REDO}")
    p("s_waitcnt lgkmcnt(0)")
    p("v_cmp_ne_u32 vcc, 0, v4")
    p("s_cbranch_vccnz SLOWA")
    if DIAGP: p("s_waitcnt lgkmcnt(0)"); p("s_add_u32 s82, s72, s69")
    p.dump_stamps(10, SWS, 2, S_W, STAMP2, (4, 5))
    p("s_endpgm")
    p.label("BP")
    j = Or(0) + 10
    p(f"ds_read2st64_b32 v[{j}:{j+1}], v3 offset0:{FF//256} offset1:{FF//256 + 1}")
    p("s_waitcnt lgkmcnt(0)")
    p(f"v_and_b32 v{j}, v{j}, v{j+1}")
    p(f"v_cmp_ne_u32 vcc, 1, v{j}")
    p("s_cbranch_vccz BPRET")
    spin(p, "BP", 4)
    p.label("QW")
    j = Or(1) + 10
    p(f"s_cmp_lt_u32 s{S_A}, 4")
    p("s_cbranch_scc0 QW2")
    p("s_waitcnt vmcnt(0)")
    p(f"ds_add_u32 v3, v2 offset:{QRDY}")
    p.label("QW2")
    p(f"ds_read_b32 v{j}, v3 offset:{QRDY}")
    p(f"ds_read_b128 v[{Q}:{Q+3}], v0 offset:1024")
    p("s_waitcnt lgkmcnt(1)")
    p(f"v_cmp_ne_u32 vcc, {cnt(4) + 4:#x}, v{j}")
    p("s_cbranch_vccz QWRET")
    spin(p, "QW2", 1)

    p.label("GEMM")
    p("v_lshlrev_b32 v28, 4, v0")
    for r in range(4): p(f"v_mov_b32 v{32+r}, 0")
    p(f"ds_write_b128 v28, v[32:35] offset:{CNT}")
    p(f"ds_write_b128 v28, v[32:35] offset:{ZEND - 4096}")
    p("v_lshlrev_b32 v24, 2, v1")
    p("v_mov_b32 v25, 0")
    p("s_lshl_b32 s3, s3, 6")
    p("v_add_u32 v22, s3, v1")
    p("s_movk_i32 s60, 3072")
    p("v_mul_u32_u24 v22, s60, v22")
    p(f"s_lshl_b32 s62, s{S_HG}, 7")
    p(f"s_lshl_b32 s63, s{S_W}, 10")
    p("s_add_u32 s62, s62, s63")
    p("s_waitcnt lgkmcnt(0)")
    p(f"s_mov_b64 s[{SWS}:{SWS+1}], s[{P_WS}:{P_WS+1}]")
    p(f"s_mov_b32 s3, {EPO:#x}")
    p(f"buffer_load_dword v25, v25, {W}, s3 offen sc1")
    srd(p, SW1, 6, 512 * 3072)
    p(f"s_cmp_eq_u32 s{S_W}, 3")
    p("s_cbranch_scc1 NOTCH")
    if TOUCH: p(f"buffer_load_dword v132, v22, s[{SW1}:{SW1+3}], s62 offen")
    p.label("NOTCH")
    p("s_getpc_b64 s[62:63]")
    p.label("PC0")
    p(f"s_sub_u32 s62, s62, PC0-{name}")
    p("s_subb_u32 s63, s63, 0")
    p("s_bfe_u32 s3, s2, 0x30003")
    p("s_lshl_b32 s3, s3, 12")
    p("v_add_u32 v22, s3, v28")
    p("global_load_dwordx4 v[128:131], v22, s[62:63]")
    p("v_and_b32 v20, 31, v1")
    p("v_lshrrev_b32 v21, 5, v1")
    p("v_bfe_u32 v22, v1, 1, 3")
    p("v_xor_b32 v22, v22, v21")
    p("v_lshlrev_b32 v22, 4, v22")
    p("v_lshl_add_u32 v22, v20, 7, v22")
    p(f"s_lshr_b32 s3, s{S_W}, 1")
    p("s_lshl_b32 s3, s3, 12")
    p(f"s_add_u32 s3, s3, {XRES:#x}")
    p("v_add_u32 v2, s3, v22")
    for t in range(1, 4): p(f"v_xor_b32 v{2+t}, {t*32}, v2")
    p("v_bfe_u32 v22, v1, 2, 2")
    p("v_lshl_add_u32 v23, v21, 3, v22")
    p("v_lshlrev_b32 v23, 7, v23")
    p("v_bfe_u32 v26, v1, 4, 1")
    p("v_lshlrev_b32 v26, 1, v26")
    p("v_bfe_u32 v27, v1, 1, 1")
    p("v_or_b32 v26, v26, v27")
    p(f"s_and_b32 s3, s{S_W}, 1")
    p("s_lshl_b32 s3, s3, 2")
    p("v_or_b32 v26, s3, v26")
    p("v_bfe_u32 v27, v1, 3, 1")
    p("v_lshlrev_b32 v27, 2, v27")
    p("v_xor_b32 v26, v26, v27")
    p("v_lshl_add_u32 v23, v26, 4, v23")
    p("v_and_b32 v27, 1, v1")
    p("v_lshl_add_u32 v10, v27, 3, v23")
    p(f"v_add_u32 v11, {WSL[2]:#x}, v10")
    p(f"s_mov_b32 s{S_L2E}, {f2u(LOG2E):#x}")
    p(f"s_mov_b32 s{S_L2E+1}, {f2u(LOG2E):#x}")
    p(f"s_mov_b32 s{S_EPS}, {f2u(1e-6):#x}")
    p(f"s_mov_b32 s{S_EPS+1}, {f2u(1e-6):#x}")
    p(f"s_lshl_b32 s3, s{S_RB}, 1")
    p(f"s_lshr_b32 s62, s{S_W}, 1")
    p("s_add_u32 s3, s3, s62")
    p("s_lshl_b32 s3, s3, 5")
    p(f"s_lshl_b32 s62, s{S_HG}, 2")
    p("s_add_u32 s3, s3, s62")
    p(f"s_and_b32 s62, s{S_W}, 1")
    p("s_lshl_b32 s62, s62, 1")
    p("s_add_u32 s3, s3, s62")
    p("s_lshl_b32 s3, s3, 10")
    p("v_lshl_add_u32 v26, v1, 4, s3")
    p(f"s_mov_b32 s63, {PQF:#x}")
    p(f"s_mul_i32 s64, s{S_RB}, {KVN*4}")
    p(f"s_lshl_b32 s3, s{S_HG}, 1")
    p(f"s_and_b32 s62, s{S_W}, 1")
    p("s_add_u32 s3, s3, s62")
    p("s_mul_i32 s3, s3, 2176")
    p("s_add_u32 s64, s64, s3")
    p(f"s_add_u32 s64, s64, {KVP:#x}")
    p(f"s_lshl_b32 s65, s{S_RB}, 10")
    p(f"s_lshl_b32 s3, s{S_HG}, 7")
    p("s_add_u32 s65, s65, s3")
    p(f"s_add_u32 s65, s65, {EF:#x}")
    p(f"s_lshl_b32 s66, s{S_HG}, 12")
    p(f"s_lshl_b32 s3, s{S_RB}, 7")
    p("s_add_u32 s66, s66, s3")
    p(f"s_add_u32 s66, s66, {GA:#x}")
    p(f"s_cmp_eq_u32 s{S_W}, 0")
    p("s_cselect_b32 s50, -1, 0")
    p("s_mov_b32 s51, 0")
    for j in range(4): p(f"v_mov_b32 v{28+j}, 0x3f803f80")
    p("v_mov_b32 v23, 1")
    p("v_lshlrev_b32 v27, 4, v1")
    p("s_lshl_b32 s3, s62, 12")
    p("v_add_u32 v12, s3, v27")
    p("s_lshl_b32 s3, s62, 7")
    p("v_lshl_add_u32 v13, v20, 2, s3")
    p("v_lshl_add_u32 v14, v21, 2, v20")
    p("v_lshlrev_b32 v14, 4, v14")
    assert QF == 0
    QP = 136
    N1 = 4 + P2E
    P = pack(QB, QP)
    hooks = {(N1, 2): P[:4] + [f"buffer_store_dwordx4 v[{QP}:{QP+3}], v26, {W}, 0 offen sc1"],
             (N1, 3): P[4:] + [f"buffer_store_dwordx4 v[{QP+4}:{QP+7}], v26, {W}, 0 offen offset:1024 sc1"],
             ('B', 1): ["s_waitcnt vmcnt(0)", "v_add_u32 v25, 1, v25"],
             ('B', EFB): ["s_waitcnt vmcnt(0)"],
             ('A', EFB): [f"s_cmp_eq_u32 s{S_W}, 0", "s_cbranch_scc0 NOEF", "s_mov_b32 exec_hi, 0",
                          f"buffer_store_dword v25, v24, {W}, s65 offen sc1", "s_mov_b64 exec, -1", "NOEF:"],
             ('A', 10): ["s_setprio 3"]}
    gemm(p, hooks)
    p(f"v_readfirstlane_b32 s{S_NON}, v25")
    p(f"ds_add_u32 v24, v23 offset:{QRDY}")
    def publish(row, sflag, lab, vm):
        p(f"s_waitcnt vmcnt({vm})")
        p(f"ds_add_rtn_u32 v22, v24, v23 offset:{row}")
        p("s_waitcnt lgkmcnt(0)")
        p("v_cmp_ne_u32 vcc, 3, v22")
        p(f"s_cbranch_vccnz {lab}")
        flag_store(p, 25, 24, sflag)
        p.label(lab)
    KVA, ZA = 136, 152
    phi_half(p, KA, 32, 128)
    for l in pack(VA, 40): p(l)
    phi_half(p, KA + 8, 36, 128)
    p(f"s_cmp_lt_u32 s{S_W}, 2")
    p("s_cbranch_scc1 KV0")
    for i in range(4): p(f"ds_write_b128 v12, v[{32+4*i}:{35+4*i}] offset:{XT0 + i*1024}")
    p(f"ds_write_b32 v13, v23 offset:{XCH}")
    p.label("KV0")
    def kvm(i):
        b = 32 + (i >> 1) * 16 + (i & 1) * 4
        A = f"v[{b}:{b+3}]"; B = f"v[{b+8}:{b+11}]"
        c1 = "0" if i == 0 else f"v[{KVA}:{KVA+15}]"; c2 = "0" if i == 0 else f"v[{ZA}:{ZA+15}]"
        return [f"v_mfma_f32_32x32x16_bf16 v[{KVA}:{KVA+15}], {A}, {B}, {c1}",
                f"v_mfma_f32_32x32x16_bf16 v[{ZA}:{ZA+15}], {A}, v[28:31], {c2}"]
    phi_half(p, QA, 64, 128)
    p(f"buffer_store_dwordx4 v[64:67], v26, {W}, s63 offen sc1")
    phi_half(p, QA + 8, 68, 128)
    p(f"buffer_store_dwordx4 v[68:71], v26, {W}, s63 offen offset:1024 sc1")
    p.stamp(2)
    p(f"s_cmp_lt_u32 s{S_W}, 2")
    p("s_cbranch_scc0 SIDE")
    for i in range(2):
        for l in kvm(i): p(l)
    lds_wait(p, "XW", XCH, 1, 13, 22, 1)
    for i in range(4): p(f"ds_read_b128 v[{48+4*i}:{51+4*i}], v12 offset:{XT0 + i*1024}")
    p("s_waitcnt lgkmcnt(0)")
    for i in range(2, 4):
        for l in kvm(i): p(l)
    p("s_mov_b32 exec_lo, 0xffff0000")
    p("s_mov_b32 exec_hi, 0xffff0000")
    for j in range(4): p(f"v_pk_mov_b32 v[{KVA+2*j}:{KVA+2*j+1}], v[{KVA+8+2*j}:{KVA+9+2*j}], v[{KVA+8+2*j}:{KVA+9+2*j}] op_sel:[0,1]")
    p("s_mov_b64 exec, -1")
    for q in range(2):
        p(f"buffer_store_dwordx4 v[{KVA+4*q}:{KVA+4*q+3}], v27, {W}, s64 offen offset:{q*1024} sc1")
    for n in range(1, 4):
        p(f"s_mov_b32 exec_lo, {1 << n}")
        p(f"s_mov_b32 exec_hi, {1 << n}")
        for j in range(2): p(f"v_pk_mov_b32 v[{ZA+2*j}:{ZA+2*j+1}], v[{ZA+4*n+2*j}:{ZA+4*n+2*j+1}], v[{ZA+4*n+2*j}:{ZA+4*n+2*j+1}] op_sel:[0,1]")
    p("s_mov_b32 exec_lo, 15")
    p("s_mov_b32 exec_hi, 15")
    p(f"buffer_store_dwordx4 v[{ZA}:{ZA+3}], v14, {W}, s64 offen offset:2048 sc1")
    p("s_mov_b64 exec, -1")

    p.label("SIDE")
    if STG: p.mute = set(range(5, 12))
    p.stamp(5)
    T = 8; ST = 72; ACC = 136
    S_SW = S_W
    logical_id(p)
    publish(GCNT, 66, "NOGF", 0)
    p.stamp(6)
    p("v_lshlrev_b32 v4, 2, v1")
    p("v_mov_b32 v6, 1")
    p("v_lshlrev_b32 v0, 4, v1")
    p("v_and_b32 v2, 7, v1")
    p("v_lshlrev_b32 v2, 2, v2")
    p("v_and_b32 v3, 31, v1")
    p("v_lshlrev_b32 v3, 2, v3")
    srd(p, SOUT, P_OUT, 2048 * 1024)
    p(f"s_mov_b32 s{S_B}, 0")
    p(f"s_mov_b32 s{S_MODE}, 0")
    p(f"s_mov_b64 s[{S_BAD}:{S_BAD+1}], 0")
    p(f"s_lshr_b32 s13, s{S_L}, 3")
    p("s_lshl_b32 s13, s13, 7")
    p.dry_run("TL", "TL_RET")
    lds_wait(p, "POLLST", LDI2, f"{cnt(4):#x}", 4, T, 4)
    p.stamp(8)
    p("s_cmp_lt_u32 s2, 68")
    p("s_cbranch_scc0 NORED")
    p(f"s_cmp_eq_u32 s{S_SW}, 1")
    p("s_cbranch_scc0 NORED")
    p("s_mul_i32 s3, s2, 7711")
    p("s_lshr_b32 s3, s3, 16")
    p("s_min_u32 s3, s3, 6")
    p("s_lshl_b32 s3, s3, 12")
    p(f"s_add_u32 s11, s3, {GA:#x}")
    p("v_lshlrev_b32 v7, 7, v1")
    if RGATE >= 0: lds_wait(p, "RG", CNT + RGATE * 256, f"{cnt(4):#x}", 4, T, 4, op="gt")
    if 'kvd' in exp: p.stamp(2)
    flag_wait(p, "RKW", T, 7, "s11", 4)
    if 'kvd' in exp: p.stamp(3)
    p("v_lshlrev_b32 v7, 3, v1")
    p("s_lshl_b32 s12, s2, 9")
    p(f"s_add_u32 s12, s12, {KVP:#x}")
    for i in range(32):
        p(f"buffer_load_dwordx2 v[{ST+2*i}:{ST+2*i+1}], v7, {W}, s12 offen sc1")
        if i < 31: p(f"s_add_u32 s12, s12, {KVN*4}")
    p("s_waitcnt vmcnt(0)")
    n = 32
    while n > 1:
        n //= 2
        for i in range(n):
            a, b = (2 * i, 2 * i + 1)
            p(f"v_pk_add_f32 v[{ST+2*i}:{ST+2*i+1}], v[{ST+2*a}:{ST+2*a+1}], v[{ST+2*b}:{ST+2*b+1}]")
    p(f"v_cvt_pk_bf16_f32 v{ST}, v{ST}, v{ST+1}")
    p("s_lshl_b32 s12, s2, 8")
    p(f"s_add_u32 s12, s12, {KVF:#x}")
    p(f"buffer_store_dword v{ST}, v4, {W}, s12 offen sc1")
    if 'kvd' in exp: p.stamp(4); p("s_waitcnt vmcnt(0)"); p.stamp(5)
    p.label("NORED")
    p(f"s_lshl_b32 s10, s{S_L}, 5")
    p(f"s_add_u32 s10, s10, {GT:#x}")
    p(f"s_lshl_b32 s11, s{S_RT}, 7")
    p(f"s_add_u32 s11, s11, {GT:#x}")
    p(f"s_lshl_b32 s3, s{S_RT}, 15")
    p(f"s_lshl_b32 s12, s{S_SW}, 13")
    p("s_add_u32 s3, s3, s12")
    p(f"s_add_u32 s3, s3, {PQF:#x}")
    p.stamp(7)
    p("s_mov_b32 s15, s11")
    p("s_mov_b32 s14, s3")
    def wld(dst, i): return f"buffer_load_dwordx4 v[{dst+4*i}:{dst+4*i+3}], v0, {W}, s3 offen offset:{(i&3)*1024} sc1"
    def load16(sreg, dst):
        p(f"s_mov_b32 s3, s{sreg}")
        for i in range(16):
            p(wld(dst, i))
            if i & 3 == 3 and i < 15: p("s_add_u32 s3, s3, 4096")
    p(f"s_lshl_b32 s{S_WA}, s{S_SUB}, 2")
    p(f"s_add_u32 s{S_WA}, s{S_WA}, s{S_SW}")
    p(f"s_lshl_b32 s{S_WA}, s{S_WA}, 15")
    p(f"s_add_u32 s{S_WA}, s{S_WA}, {WAF:#x}")
    load16(S_WA, ST)
    p(f"s_add_u32 s{S_WA}, s{S_WA}, 0x4000")
    p(f"s_add_u32 s11, s13, {GA:#x}")
    p("v_lshl_add_u32 v7, v2, 10, s11")
    flag_wait(p, "PPW", T, 7, "0", 8)
    p(f"buffer_load_dword v5, v2, {W}, s10 offen sc1")
    p(f"buffer_load_dword v6, v3, {W}, s15 offen sc1")
    for i in range(8):
        p(f"buffer_load_dwordx4 v[{T+32+4*i}:{T+32+4*i+3}], v0, {W}, s14 offen offset:{(i&3)*1024} sc1")
        if i == 3: p("s_add_u32 s14, s14, 4096")
    p(f"v_lshrrev_b32 v{T}, 5, v1")
    p(f"v_and_b32 v{T+1}, 15, v1")
    p(f"v_lshl_add_u32 v{T+1}, v{T}, 5, v{T+1}")
    p(f"v_lshlrev_b32 v{T+1}, 3, v{T+1}")
    p(f"v_lshlrev_b32 v{T}, 5, v{T}")
    p(f"v_add_u32 v{T}, 1024, v{T}")
    p("v_cmp_lt_u32 vcc, 60, v3")
    for e in range(2):
        for q in range(2):
            p(f"v_add_u32 v{T+2}, {e*128 + q*512}, v{T+1}")
            p(f"v_add_u32 v{T+3}, {e*16 + q*8}, v{T}")
            p(f"v_cndmask_b32 v{ACC+4+2*e+q}, v{T+2}, v{T+3}, vcc")
    p(f"s_mul_i32 s12, s{S_SW}, {4*1088}")
    p(f"s_add_u32 s12, s12, {KVF:#x}")
    if KGATE >= 0: lds_wait(p, "KG", CNT + KGATE * 256, f"{cnt(4):#x}", 4, T, 4, op="gt")
    if 'kvd' in exp: p.stamp(8)
    p(f"s_mov_b32 s{S_SP}, 0")
    p.label("POLLKV")
    for i in range(8):
        for q in range(2):
            p(f"buffer_load_dwordx2 v[{T+4*i+2*q}:{T+4*i+2*q+1}], v{ACC+4+2*(i&1)+q}, {W}, s12 offen offset:{(i>>1)*1088} sc1")
    p("s_waitcnt vmcnt(0)")
    p(f"v_max3_u32 v{ACC}, v{T}, v{T+1}, v{T+2}")
    for i in range(3, 31, 2): p(f"v_max3_u32 v{ACC}, v{ACC}, v{T+i}, v{T+i+1}")
    p(f"v_max_u32 v{ACC}, v{ACC}, v{T+31}")
    p(f"v_cmp_eq_u32 vcc, -1, v{ACC}")
    p("s_cbranch_vccz GOTKV")
    p(f"s_add_u32 s{S_SP}, s{S_SP}, 1")
    p(f"s_cmp_gt_u32 s{S_SP}, 0x8000")
    p("s_cbranch_scc1 GOTKV")
    p("s_sleep 8")
    p("s_branch POLLKV")
    p.label("GOTKV")
    if 'kvd' in exp: p("s_waitcnt lgkmcnt(0)"); p(f"s_add_u32 s84, s72, s{S_SP}")
    p.stamp(9)
    p(f"s_lshl_b32 s3, s{S_SW}, 13")
    p(f"s_add_u32 s3, s3, {OAF}")
    p("v_add_u32 v7, s3, v0")
    p(f"s_mov_b32 s11, {f2u(1e-6):#x}")
    p("v_sub_f32 v5, 1.0, v5")
    def oa_mfma(i):
        o = ACC + 16 * (i & 1)
        p(f"v_mfma_f32_32x32x16_bf16 v[{o}:{o+15}], v[{T+4*i}:{T+4*i+3}], v[{T+32+4*i}:{T+32+4*i+3}], 0")
    def t1(k): return T + 4 * (k >> 1) + 32 * (k & 1)
    p(f"s_mov_b32 s3, s{S_WA}")
    oa_mfma(0)
    for i in range(8):
        if i < 7: oa_mfma(i + 1)
        for k in (2 * i, 2 * i + 1):
            p(f"buffer_load_dwordx4 v[{t1(k)}:{t1(k)+3}], v0, {W}, s3 offen offset:{(k&3)*1024} sc1")
        if i & 1 and i < 7: p("s_add_u32 s3, s3, 4096")
        o = ACC + 16 * (i & 1)
        p(f"v_add_f32 v{o+8}, s11, v{o+8}")
        p(f"v_rcp_f32 v{o+8}, v{o+8}")
        p(f"v_mul_f32 v{o+8}, v6, v{o+8}")
        for j in range(4): p(f"v_pk_mul_f32 v[{o+2*j}:{o+2*j+1}], v[{o+2*j}:{o+2*j+1}], v[{o+8}:{o+9}] op_sel_hi:[1,0]")
        for j in range(4): p(f"v_cvt_pk_bf16_f32 v{o+12+j}, v{o+2*j}, v{o+2*j+1}")
        p(f"ds_write_b128 v7, v[{o+12}:{o+15}] offset:{i*1024}")
    p("v_mov_b32 v6, 1")
    p(f"ds_add_u32 v4, v6 offset:{OACNT}")
    p.label("POLLOA")
    p(f"ds_read_b32 v7, v4 offset:{OACNT}")
    p("s_waitcnt lgkmcnt(0)")
    p(f"v_cmp_ne_u32 vcc, 4, v7")
    p("s_cbranch_vccz GOTOA")
    spin(p, "POLLOA", 2)
    p.label("GOTOA")
    B = ACC + 16
    p(f"s_lshl_b32 s{S_WB}, s{S_SW}, 14")
    p(f"s_add_u32 s{S_WB}, s{S_WB}, {WBF:#x}")
    p(f"s_mov_b32 s3, s{S_WB}")
    p(f"s_add_u32 s{S_WB}, s{S_WB}, 0x10000")
    order = [(i >> 1) + 16 * (i & 1) for i in range(32)]
    def brd(k): p(f"ds_read_b128 v[{B+4*(k&3)}:{B+4*(k&3)+3}], v0 offset:{OAF + order[k]*1024}")
    brd(0); brd(1)
    p("s_waitcnt vmcnt(0)")
    for k in range(32):
        hd = order[k]; src = ST + 4 * hd if hd < 16 else t1(hd - 16)
        if k + 2 < 32: brd(k + 2)
        p(f"s_waitcnt lgkmcnt({min(2, 31-k)})")
        C = "0" if k == 0 else f"v[{ACC}:{ACC+15}]"
        p(f"v_mfma_f32_32x32x16_bf16 v[{ACC}:{ACC+15}], v[{src}:{src+3}], v[{B+4*(k&3)}:{B+4*(k&3)+3}], {C}")
        if hd < 16:
            p(wld(ST, hd))
            if hd & 3 == 3 and hd < 15: p("s_add_u32 s3, s3, 4096")
    p(f"s_lshl_b32 s3, s{S_L}, 2")
    p(f"s_add_u32 s3, s3, s{S_SW}")
    p("s_lshl_b32 s10, s3, 12")
    p(f"s_add_u32 s10, s10, {OUTA:#x}")
    for q in range(4):
        p(f"buffer_store_dwordx4 v[{ACC+4*q}:{ACC+4*q+3}], v0, {W}, s10 offen offset:{q*1024} sc1")
    p("s_lshl_b32 s13, s3, 7")
    p(f"s_add_u32 s13, s13, {FA:#x}")
    p("v_mov_b32 v7, 0")
    p("v_lshrrev_b32 v3, 5, v1")
    p("v_lshlrev_b32 v3, 7, v3")
    p("v_lshl_add_u32 v3, v2, 2, v3")
    p(f"v_bfe_u32 v{T}, v1, 4, 1")
    p(f"v_lshl_add_u32 v3, v{T}, 9, v3")
    p(f"v_add_u32 v3, {QL}, v3")
    MSK = f"s[{S_MSK}:{S_MSK+1}]"
    p(f"s_mov_b32 s{S_MSK}, 0x00ff00ff")
    p(f"s_mov_b32 s{S_MSK+1}, 0x00ff00ff")
    p(f"s_not_b64 exec, {MSK}")
    p(f"v_mov_b32 v3, {ZERO}")
    p("s_mov_b64 exec, -1")
    p(f"s_mov_b32 s{S_C8}, {cnt(8):#x}")
    p(f"s_mov_b32 s{S_DU}, s{S_SW}")
    p(f"s_mov_b32 s{S_LO}, {(127-80) << 23:#x}")
    p(f"s_mov_b32 s{S_RNG}, {180 << 23:#x}")
    p(f"s_mov_b32 s{S_AF}, 0")
    for r in range(16): p(f"v_pk_mov_b32 v[{ACC+2*r}:{ACC+2*r+1}], 0, 0")
    p(f"s_lshl_b32 s14, s{S_RT}, 2")
    p(f"s_add_u32 s14, s14, s{S_SW}")
    p("s_lshl_b32 s15, s14, 14")
    p(f"s_lshl_b32 s10, s{S_SUB}, 7")
    p("s_add_u32 s15, s15, s10")
    p(f"s_add_u32 s15, s15, {OUTA:#x}")
    p("s_lshl_b32 s14, s14, 9")
    p(f"s_add_u32 s14, s14, {FA:#x}")
    p(f"s_lshl_b32 s3, s2, 2")
    p(f"s_add_u32 s3, s3, s{S_SW}")
    p("s_cmp_eq_u32 s3, 3")
    p("s_cbranch_scc0 NOEP")
    p(f"v_mov_b32 v{T}, s{S_NON}")
    p(f"s_mov_b32 s12, {EPO:#x}")
    p("s_mov_b64 exec, 1")
    p(f"buffer_store_dword v{T}, v7, {W}, s12 offen sc1")
    p("s_mov_b64 exec, -1")
    p.label("NOEP")
    p.stamp(10)
    if 'blk' in exp: p.stamp(2)

    p.label("BLK")
    p(f"s_lshl_b32 m0, s{S_DU}, 8")
    p(f"ds_read_b32 v{T+1}, v4 offset:{FF}")
    p(f"ds_read_addtid_b32 v{T} offset:{CNT}")
    p("s_waitcnt lgkmcnt(0)")
    p(f"v_cmp_ne_u32 vcc, s{S_C8}, v{T}")
    p("s_cbranch_vccz DUTY")
    p(f"v_cmp_ne_u32 vcc, 1, v{T+1}")
    p("s_cbranch_vccz GOTF")
    spin(p, "BLK", BSL)
    p.label("DUTY")
    p(f"s_cmp_ge_u32 s{S_DU}, 6")
    p(f"s_cselect_b32 s3, 6, 0")
    p(f"s_sub_u32 s3, s{S_DU}, s3")
    p("s_lshl_b32 s10, s3, 14")
    p(f"s_add_u32 s10, s10, {PART}")
    p("v_add_u32 v7, s10, v0")
    p("s_lshl_b32 m0, s3, 11")
    Lr = T + 56
    for w in range(8): p(f"ds_read_addtid_b32 v{Lr+w} offset:{LPL + w*256}")
    for i in range(6): p(f"ds_read_b128 v[{T+4*i}:{T+4*i+3}], v7 offset:{i*1024}")
    p("s_waitcnt lgkmcnt(6)")
    p(f"v_pk_add_f32 v[{Lr}:{Lr+1}], v[{Lr}:{Lr+1}], v[{Lr+2}:{Lr+3}]")
    p(f"v_pk_add_f32 v[{Lr+4}:{Lr+5}], v[{Lr+4}:{Lr+5}], v[{Lr+6}:{Lr+7}]")
    for i in range(6, 14): p(f"ds_read_b128 v[{T+4*i}:{T+4*i+3}], v7 offset:{i*1024}")
    p(f"v_pk_add_f32 v[{Lr}:{Lr+1}], v[{Lr}:{Lr+1}], v[{Lr+4}:{Lr+5}]")
    p(f"v_add_f32 v6, v{Lr}, v{Lr+1}")
    p("s_waitcnt lgkmcnt(10)")
    for i in range(14, 16): p(f"ds_read_b128 v[{T+4*i}:{T+4*i+3}], v7 offset:{i*1024}")
    p(f"v_subrev_u32 v7, s{S_LO}, v6")
    p(f"v_rcp_f32 v6, v6")
    p(f"v_cmp_le_u32 vcc, s{S_RNG}, v7")
    def padd(w):
        for j in range(4):
            p(f"v_pk_add_f32 v[{T+2*j}:{T+2*j+1}], v[{T+2*j}:{T+2*j+1}], v[{T+8*w+2*j}:{T+8*w+2*j+1}]")
    padd(1)
    p(f"s_or_b64 s[{S_BAD}:{S_BAD+1}], s[{S_BAD}:{S_BAD+1}], vcc")
    p(f"v_mul_f32 v6, v5, v6")
    for w in range(2, 8):
        p(f"s_waitcnt lgkmcnt({2*(7-w)})")
        padd(w)
    for j in range(4):
        p(f"v_pk_mul_f32 v[{T+2*j}:{T+2*j+1}], v[{T+2*j}:{T+2*j+1}], v[6:7] op_sel_hi:[1,0]")
    for j in range(4): p(f"v_cvt_pk_bf16_f32 v{T+8+j}, v{T+2*j}, v{T+2*j+1}")
    p(f"s_lshl_b32 s3, s{S_DU}, 10")
    p("v_add_u32 v7, s3, v0")
    p("v_mov_b32 v6, 1")
    p(f"s_lshl_b32 m0, s{S_DU}, 8")
    p(f"ds_write_b128 v7, v[{T+8}:{T+11}] offset:{QL}")
    p(f"ds_write_addtid_b32 v6 offset:{FF}")
    p(f"s_mov_b32 s3, s{S_DU}")
    p(f"s_add_u32 s{S_DU}, s{S_DU}, 4")
    p(f"s_cmp_eq_u32 s3, s{S_B}")
    p("s_cbranch_scc0 BLK")
    p.label("GOTF")
    if 'blk' in exp:
        p("s_waitcnt lgkmcnt(0)")
        for k in range(4, 10): p(f"s_mov_b32 s{70+2*k}, s{72+2*k}")
        p("s_memtime s[90:91]")
    p(f"ds_read_b128 v[{T+16}:{T+19}], v3")
    p(f"ds_read_b128 v[{T+20}:{T+23}], v3 offset:256")
    p("v_add_u32 v4, 256, v4")
    p(f"s_mov_b64 exec, {MSK}")
    p("v_add_u32 v3, 1024, v3")
    p("s_mov_b64 exec, -1")
    def bm(i):
        ct, ks = i >> 1, i & 1
        a = ACC + ct * 4
        p(f"v_mfma_f32_16x16x32_bf16 v[{a}:{a+3}], v[{ST+4*i}:{ST+4*i+3}], v[{T+16+4*ks}:{T+19+4*ks}], v[{a}:{a+3}]")
    p(f"s_cmp_eq_u32 s{S_AF}, 1")
    p("s_cbranch_scc1 GA1")
    p(f"s_cmp_eq_u32 s{S_AF}, 2")
    p("s_cbranch_scc1 GA2")
    p.label("GAR")
    p(f"s_mov_b32 s3, s{S_WB}")
    p(f"s_add_u32 s{S_WB}, s{S_WB}, 0x10000")
    p(f"s_cmp_eq_u32 s{S_B}, 6")
    p("s_waitcnt lgkmcnt(0)")
    p("s_cbranch_scc1 B6")
    for i in range(16):
        p("s_waitcnt vmcnt(15)")
        if 'nobm' not in exp: bm(i)
        if 'nowb' not in exp: p(wld(ST, i))
        else: p("s_nop 7"); p("s_nop 7")
        if i & 3 == 3 and i < 15: p("s_add_u32 s3, s3, 4096")
    p(f"s_cmp_lt_u32 s{S_AF}, 3")
    p("s_cbranch_scc1 GB0")
    p.label("GBR")
    p(f"s_add_u32 s{S_B}, s{S_B}, 1")
    p(f"s_cmp_eq_u32 s{S_B}, 5")
    p("s_cbranch_scc0 BLK")
    p(f"s_lshl_b32 s10, s{S_SW}, 14")
    p(f"s_cmp_lt_u32 s{S_SW}, 2")
    p(f"s_mov_b32 s11, {PART}")
    p(f"s_cselect_b32 s11, {OAF}, s11")
    p(f"s_add_u32 s{S_W7}, s10, s11")
    p(f"s_mov_b32 m0, s{S_W7}")
    p(f"s_add_u32 s3, s{S_WB}, 0x10000")
    for i in range(16):
        p(f"buffer_load_dwordx4 v0, {W}, s3 offen offset:{(i&3)*1024} sc1 lds")
        if i & 3 == 3 and i < 15:
            p("s_add_u32 s3, s3, 4096")
            p("s_add_u32 m0, m0, 4096")
    p("s_branch BLK")
    p.label("B6")
    p(f"v_add_u32 v7, s{S_W7}, v0")
    p("s_waitcnt vmcnt(0)")
    for i in range(16):
        bm(i)
        if i >= 12: p(f"s_waitcnt lgkmcnt(11)")
        p(f"ds_read_b128 v[{ST+4*i}:{ST+4*i+3}], v7 offset:{i*1024}")
    p(f"s_cmp_lt_u32 s{S_AF}, 3")
    p("s_cbranch_scc1 GLATE")
    p.label("GLR")
    QD, QLr, QF_, QG, OA = T + 32, T + 33, T + 34, T + 35, T + 36
    p(f"s_and_b32 s10, s{S_SW}, 1")
    p(f"s_lshr_b32 s11, s{S_SW}, 1")
    p("s_lshl_b32 s3, s10, 10")
    p("s_lshl_b32 s12, s11, 9")
    p("s_add_u32 s3, s3, s12")
    p(f"s_add_u32 s3, s3, {PART + PS}")
    p(f"v_lshl_add_u32 v{QD}, v1, 3, s3")
    p("v_lshrrev_b32 v7, 1, v1")
    p("s_lshl_b32 s3, s11, 7")
    p(f"s_add_u32 s3, s3, {LPL + 2048}")
    p(f"v_lshl_add_u32 v{QLr}, v7, 2, s3")
    p("v_lshlrev_b32 v6, 2, v7")
    p(f"ds_bpermute_b32 v{QG}, v6, v5")
    p("s_lshl_b32 s3, s10, 3")
    p("s_add_u32 s3, s3, s12")
    p(f"s_add_u32 s3, s3, {QL + 7*1024}")
    p(f"v_lshl_add_u32 v{QF_}, v7, 4, s3")
    p("v_and_b32 v7, 1, v1")
    p(f"v_lshl_add_u32 v{QF_}, v7, 2, v{QF_}")
    p(f"v_lshlrev_b32 v{OA}, 8, v2")
    p("v_lshrrev_b32 v7, 4, v1")
    p(f"v_lshl_add_u32 v{OA}, v7, 4, v{OA}")
    p(f"s_lshl_b32 s{S_OO}, s{S_L}, 13")
    p(f"s_lshl_b32 s10, s{S_SW}, 8")
    p(f"s_add_u32 s{S_OO}, s{S_OO}, s10")
    p("v_lshlrev_b32 v4, 2, v1")
    p("v_mov_b32 v6, 1")
    p.stamp(11)
    p.label("LAST")
    p("s_waitcnt vmcnt(0) lgkmcnt(0)")
    p("s_barrier")
    p.hops_begin("TL")
    for i in range(4): p(f"ds_read2st64_b32 v[{T+24+2*i}:{T+25+2*i}], v{QLr} offset0:{2*i} offset1:{2*i+1}")
    for i in range(4): p(f"ds_read2st64_b64 v[{T+4*i}:{T+4*i+3}], v{QD} offset0:{8*i} offset1:{8*i+4}")
    p("s_waitcnt lgkmcnt(4)")
    p(f"v_pk_add_f32 v[{T+24}:{T+25}], v[{T+24}:{T+25}], v[{T+26}:{T+27}]")
    p(f"v_pk_add_f32 v[{T+28}:{T+29}], v[{T+28}:{T+29}], v[{T+30}:{T+31}]")
    p(f"v_pk_add_f32 v[{T+24}:{T+25}], v[{T+24}:{T+25}], v[{T+28}:{T+29}]")
    p(f"v_add_f32 v{T+24}, v{T+24}, v{T+25}")
    p(f"v_subrev_u32 v7, s{S_LO}, v{T+24}")
    p(f"v_rcp_f32 v{T+24}, v{T+24}")
    p(f"v_cmp_le_u32 vcc, s{S_RNG}, v7")
    p("s_waitcnt lgkmcnt(0)")
    n = 8
    while n > 1:
        n //= 2
        for i in range(n):
            p(f"v_pk_add_f32 v[{T+2*i}:{T+2*i+1}], v[{T+4*i}:{T+4*i+1}], v[{T+4*i+2}:{T+4*i+3}]")
        if n == 4: p(f"v_mul_f32 v{T+24}, v{QG}, v{T+24}")
    p(f"s_or_b64 s[{S_BAD}:{S_BAD+1}], s[{S_BAD}:{S_BAD+1}], vcc")
    p(f"v_pk_mul_f32 v[{T}:{T+1}], v[{T}:{T+1}], v[{T+24}:{T+25}] op_sel_hi:[1,0]")
    p(f"v_cvt_pk_bf16_f32 v{T}, v{T}, v{T+1}")
    p("s_cbranch_scc0 OKL")
    p(f"ds_write_b32 v4, v6 offset:{REDO}")
    p.label("OKL")
    p(f"ds_write_b32 v{QF_}, v{T}")
    p("s_waitcnt lgkmcnt(0)")
    p("s_barrier")
    p(f"ds_read_b128 v[{T+16}:{T+19}], v3")
    p(f"ds_read_b128 v[{T+20}:{T+23}], v3 offset:256")
    p(f"ds_read_b32 v7, v4 offset:{REDO}")
    p("s_waitcnt lgkmcnt(0)")
    p("v_cmp_ne_u32 vcc, 0, v7")
    p("s_cbranch_vccnz SLOWS")
    def fin(i):
        for j in range(4):
            p(f"v_cvt_pk_bf16_f32 v{T+4*i+j}, v{ACC+8*i+2*j}, v{ACC+8*i+2*j+1}")
        p(f"s_mov_b64 exec, {MSK}")
        p(f"buffer_store_dwordx4 v[{T+4*i}:{T+4*i+3}], v{OA}, s[{SOUT}:{SOUT+3}], s{S_OO} offen offset:{i*64} {OM}")
        if i < 3: p("s_mov_b64 exec, -1")
    for i in range(12): bm(i)
    fin(0)
    for i in range(12, 16): bm(i)
    for i in range(1, 4): fin(i)
    p.hops_end("TL_RET", HOP)
    p.stamp(12)
    if stamps: p("s_waitcnt vmcnt(0)")
    p.stamp(13); p.stamp(14, True)
    p.dump_stamps(15, SWS, 2, S_W, STAMP2, (4, 5))
    p("s_endpgm")

    G0 = T + 24
    def geta_loads(dst):
        p("v_lshrrev_b32 v7, 4, v1")
        p("v_lshlrev_b32 v7, 10, v7")
        p("v_lshl_add_u32 v7, v2, 2, v7")
        p("s_mov_b32 s3, s15")
        for ct in range(8):
            p(f"buffer_load_dwordx4 v[{dst+4*ct}:{dst+4*ct+3}], v7, {W}, s3 offen offset:{(ct&1)*512} sc1")
            if ct & 1 and ct < 7: p("s_add_u32 s3, s3, 4096")
    def geta_flag():
        p("v_lshrrev_b32 v7, 4, v1")
        p("v_lshlrev_b32 v7, 7, v7")
    def geta_add():
        for i in range(16): p(f"v_pk_add_f32 v[{ACC+2*i}:{ACC+2*i+1}], v[{ACC+2*i}:{ACC+2*i+1}], v[{G0+2*i}:{G0+2*i+1}]")
    p.label("GA1")
    geta_flag()
    p(f"buffer_load_dword v{G0}, v7, {W}, s14 offen sc1")
    p(f"s_lshl_b32 s3, s{S_L}, 13")
    p(f"buffer_load_dword v{G0+1}, v2, s[{SOUT}:{SOUT+3}], s3 offen")
    p("s_branch GAR")
    p.label("GA2")
    geta_loads(G0)
    p("s_branch GAR")
    p.label("GB0")
    p("s_waitcnt vmcnt(16)")
    p(f"s_cmp_eq_u32 s{S_AF}, 2")
    p("s_cbranch_scc1 GB2")
    p(f"s_cmp_eq_u32 s{S_AF}, 1")
    p("s_cbranch_scc1 GB1")
    p(f"s_cmp_ge_u32 s{S_B}, {GAB}")
    p(f"s_cselect_b32 s{S_AF}, 1, 0")
    p(f"s_cmp_eq_u32 s{S_B}, 0")
    p("s_cbranch_scc0 GBR")
    p(f"v_mov_b32 v{G0}, s{S_NON}")
    p("v_lshlrev_b32 v7, 2, v1")
    flag_store(p, G0, 7, 13)
    p("s_branch GBR")
    p.label("GB1")
    p(f"v_cmp_ne_u32 vcc, s{S_NON}, v{G0}")
    p("s_cbranch_vccnz GBR")
    p(f"s_mov_b32 s{S_AF}, 2")
    p("s_branch GBR")
    p.label("GB2")
    p.pad(4)
    geta_add()
    p(f"s_mov_b32 s{S_AF}, 3")
    p("s_branch GBR")
    p.label("GLATE")
    geta_flag()
    flag_wait(p, "GLW", G0, 7, "s14", 4)
    geta_loads(G0)
    p("s_waitcnt vmcnt(0)")
    geta_add()
    p("s_branch GLR")

    p.label("SLOWS")
    p(f"s_cmp_eq_u32 s{S_MODE}, 0")
    p("s_cbranch_scc0 SLOWS2")
    p(f"s_mov_b32 s{S_MODE}, 1")
    p(f"s_mov_b32 s{S_B}, -1")
    p(f"v_mov_b32 v7, 0xff800000")
    p(f"s_lshl_b32 m0, s{S_SW}, 8")
    p.pad(8)
    p(f"ds_write_addtid_b32 v7 offset:{MXT}")
    geta_loads(ACC)
    p(f"s_lshl_b32 s{S_WB}, s{S_SW}, 14")
    p(f"s_add_u32 s{S_WB}, s{S_WB}, {WBF:#x}")
    p("s_waitcnt lgkmcnt(0)")
    p("s_barrier")
    p("s_barrier")
    p("s_branch SLOWS3")
    p.label("SLOWS2")
    for i in range(16): bm(i)
    p.label("SLOWS3")
    p(f"s_add_u32 s{S_B}, s{S_B}, 1")
    p(f"s_cmp_eq_u32 s{S_B}, 8")
    p("s_cbranch_scc1 SLOWF")
    load16(S_WB, ST)
    p(f"s_add_u32 s{S_WB}, s{S_WB}, 0x10000")
    p("s_branch LAST")
    p.label("SLOWF")
    p.pad(8)
    for i in range(4): fin(i)
    p("s_endpgm")

    p.label("SLOWA")
    S1 = S0 + 16; C = O0 + 16
    QO, MA, MX = S1, S1 + 1, S1 + 2
    p(f"v_lshrrev_b32 v{S1+3}, 2, v3")
    q_offset(p, QO, S1 + 4, S1 + 3)
    p(f"v_and_b32 v{MA}, 0x7c, v3")
    p(f"s_mov_b32 s10, s{S_QO}")
    p(f"s_mov_b32 s{S_B}, 0")
    p("s_barrier")
    p.label("SLOWM")
    p(f"buffer_load_dwordx4 v[{Q}:{Q+3}], v{QO}, {W}, s10 offen sc1")
    p(f"v_mov_b32 v{MX}, 0xff800000")
    p("s_waitcnt vmcnt(0)")
    for t in range(8):
        p(f"v_mfma_f32_32x32x16_bf16 v[{S0}:{S0+15}], {Kf(t)}, v[{Q}:{Q+3}], 0")
        for i in range(8): p(f"v_max3_f32 v{MX}, v{MX}, v{S0+2*i}, v{S0+2*i+1}")
    p(f"ds_max_f32 v{MA}, v{MX} offset:{MXT}")
    p(f"v_add_u32 v{MA}, 128, v{MA}")
    p("s_add_u32 s10, s10, 4096")
    p(f"s_add_u32 s{S_B}, s{S_B}, 1")
    p(f"s_cmp_lt_u32 s{S_B}, 8")
    p("s_cbranch_scc1 SLOWM")
    p(f"v_and_b32 v{MA}, 0x7c, v3")
    p(f"s_mov_b32 s10, s{S_QO}")
    p(f"s_mov_b32 s{S_B}, 0")
    p("s_waitcnt lgkmcnt(0)")
    p("s_barrier")
    p.label("SLOWP")
    p(f"buffer_load_dwordx4 v[{Q}:{Q+3}], v{QO}, {W}, s10 offen sc1")
    p(f"ds_read_b32 v{MX}, v{MA} offset:{MXT}")
    for r in range(9): p(f"v_mov_b32 v{O0+r}, 0")
    p("s_waitcnt vmcnt(0) lgkmcnt(0)")
    for r in range(16): p(f"v_sub_f32 v{C+r}, 0, v{MX}")
    for t in range(8):
        p(f"v_mfma_f32_32x32x16_bf16 v[{S0}:{S0+15}], {Kf(t)}, v[{Q}:{Q+3}], v[{C}:{C+15}]")
        for i in range(16): p(f"v_exp_f32 v{S0+i}, v{S0+i}")
        for s in range(2):
            p(f"v_smfmac_f32_32x32x32_bf16 v[{O0}:{O0+15}], {Vf(t,s)}, v[{S0+8*s}:{S0+8*s+7}], v2")
    for l in drain(O0, 7, False): p(l)
    p(f"v_add_u32 v{MA}, 128, v{MA}")
    p("s_add_u32 s10, s10, 4096")
    p(f"s_add_u32 s{S_B}, s{S_B}, 1")
    p("s_waitcnt lgkmcnt(0)")
    p("s_barrier")
    p("s_barrier")
    p(f"s_cmp_lt_u32 s{S_B}, 8")
    p("s_cbranch_scc1 SLOWP")
    p.label("END")
    p("s_endpgm")
    return p
```
